```python
import torch

def _softmax(x, axis=-1):
    return torch.softmax(x, dim=axis)
def _gelu(x):
    return torch.nn.functional.gelu(x, approximate="tanh")
def _silu(x):
    return torch.nn.functional.silu(x)
def _sigmoid(x):
    return torch.sigmoid(x)
def _layernorm(x, axis=-1, eps=1e-5):
    m = x.mean(dim=axis, keepdim=True)
    v = x.var(dim=axis, keepdim=True, unbiased=False)
    return (x - m) / torch.sqrt(v + eps)
def _scatter_add(tgt, idx, src, axis=0):
    return tgt.clone().index_add_(axis, idx, src)
def _segment_sum(src, seg, n):
    out = torch.zeros((n,) + src.shape[1:], dtype=src.dtype)
    return out.index_add_(0, seg, src)
def _pad(x, pw):
    flat = tuple(v for pair in reversed(pw) for v in pair)
    return torch.nn.functional.pad(x, flat)

kernel_name = 'standalone__low_rank_proj_linformer__sampling'

def setup_inputs():

    _w = (lambda a: (lambda t: t.to(torch.bfloat16) if t.is_floating_point() else t)(torch.as_tensor(a)))
    B, H, Sq, Skv, Dh, R = 8, 32, 16, 4096, 192, 8
    return {
        "q": _w((lambda *s: torch.randn(*s, dtype=torch.bfloat16) * 0.8)(B, H, Sq, Dh)),
        "k": _w((lambda *s: torch.randn(*s, dtype=torch.bfloat16) * 0.8)(B, H, Skv, Dh)),
        "v": _w((lambda *s: torch.randn(*s, dtype=torch.bfloat16) * 0.05)(B, H, Skv, Dh)),
        "e_proj": _w((lambda *s: torch.randn(*s, dtype=torch.bfloat16) * 0.8)(R, Skv) * (Skv ** -0.5)),
        "f_proj": _w((lambda *s: torch.randn(*s, dtype=torch.bfloat16) * 0.05)(R, Skv) * (Skv ** -0.5)),
    }

def reference(q, k, v, e_proj, f_proj):
    B, H, Sq, Dh = q.shape
    kp = torch.einsum("rn,bhnd->bhrd", e_proj, k)
    vp = torch.einsum("rn,bhnd->bhrd", f_proj, v)
    scores = torch.einsum("bhqd,bhrd->bhqr", q, kp) * (Dh ** -0.5)
    p = _softmax(scores, axis=-1)
    o = torch.einsum("bhqr,bhrd->bhqd", p, vp)
    return o
```

```python
import sys
KN="standalone__low_rank_proj_linformer__sampling_kernel"

HEADER = """; Kernarg layout for this problem (64 bytes, ptrs only, base s[0:1]):
"""

def gen(rotmul=4, rotshift=0, nt=" nt", W=4):
    assert W==4
    L=[]
    A=L.append
    ESTR=800
    SLOT=8*ESTR
    KPB=8*SLOT
    KPS=400
    LDS=KPB+8*KPS
    A(HEADER.rstrip("\n"))
    A(f"; @launch grid=(256,1,1) block=({W*64},1,1) lds={LDS}")
    A('.amdgcn_target "amdgcn-amd-amdhsa--gfx950"')
    A(".text"); A(f".globl {KN}"); A(".p2align 8"); A(f".type {KN},@function"); A(f"{KN}:")
    X=0; Y=96
    T=192
    AX=204; AY=208
    VO0,VO1,VO2,VOE=212,213,214,215
    PT=216
    VL=218
    VG=219
    VJ=220
    VW=221
    TMP=222
    sK=8; sV=12; sE=16; sF=20; sQ=24; sO=28; sL=32; sEL=36
    sW=40; sROT=41; sNB=42; sOFF=43; sOFFE=44; sSEL0=45; sSEL1=46; sIT=47; sPH=48; sT0=49; sT1=50
    QA=96
    A("  s_cmp_ge_u32 s2, 256")
    A("  s_cbranch_scc1 L_done")
    A("  s_load_dwordx4 s[52:55], s[0:1], 0")
    A("  s_load_dwordx4 s[56:59], s[0:1], 16")
    A("  s_load_dwordx4 s[60:63], s[0:1], 32")
    A(f"  v_and_b32 v{VL}, 63, v0")
    A(f"  v_lshrrev_b32 v{VW}, 6, v0")
    A(f"  v_lshrrev_b32 v{VG}, 4, v{VL}")
    A(f"  v_readfirstlane_b32 s{sW}, v{VW}")
    A(f"  v_and_b32 v{VJ}, 15, v{VL}")
    A(f"  v_mul_u32_u24 v{VO0}, 6144, v{VG}")
    A(f"  v_lshl_add_u32 v{VO0}, v{VJ}, 4, v{VO0}")
    A(f"  v_cmp_gt_u32 vcc, 8, v{VJ}")
    A(f"  v_mov_b32 v{TMP}, 2944")
    A(f"  v_mov_b32 v{TMP+1}, 256")
    A(f"  v_add_u32 v{VO2}, 3200, v{VO0}")
    A(f"  v_cndmask_b32 v{VO1}, v{TMP}, v{TMP+1}, vcc")
    A(f"  v_add_u32 v{VO1}, v{VO1}, v{VO0}")
    A(f"  v_and_b32 v{TMP}, 7, v{VJ}")
    A(f"  v_lshlrev_b32 v{VOE}, 13, v{TMP}")
    A(f"  v_lshl_add_u32 v{VOE}, v{VG}, 5, v{VOE}")
    A(f"  v_lshrrev_b32 v{TMP}, 3, v{VJ}")
    A(f"  v_lshl_add_u32 v{VOE}, v{TMP}, 4, v{VOE}")
    A(f"  v_mul_u32_u24 v{TMP+2}, 384, v{VJ}")
    A(f"  v_lshl_add_u32 v{TMP+2}, v{VG}, 4, v{TMP+2}")
    A(f"  s_mul_i32 s{sT0}, s2, 0x180000")
    A(f"  s_mul_i32 s{sT1}, s2, 6144")
    A(f"  s_mov_b32 s{sSEL0}, 0x05040100")
    A(f"  s_mov_b32 s{sSEL1}, 0x07060302")
    A(f"  s_lshr_b32 s{sROT}, s2, {rotshift}")
    A(f"  s_mul_i32 s{sROT}, s{sROT}, {rotmul}")
    A(f"  s_add_u32 s{sROT}, s{sROT}, s{sW}")
    A("  s_waitcnt lgkmcnt(0)")
    def srd(d, lo, hi, off, size):
        if off is None:
            A(f"  s_mov_b32 s{d}, s{lo}"); A(f"  s_mov_b32 s{d+1}, s{hi}")
        else:
            A(f"  s_add_u32 s{d}, s{lo}, s{off}"); A(f"  s_addc_u32 s{d+1}, s{hi}, 0")
        A(f"  s_mov_b32 s{d+2}, {size}"); A(f"  s_mov_b32 s{d+3}, 0x00020000")
    srd(sK,54,55,sT0,0x180000)
    srd(sV,56,57,sT0,0x180000)
    srd(sE,58,59,None,65536)
    srd(sF,60,61,None,65536)
    srd(sQ,52,53,sT1,6144)
    srd(sO,62,63,sT1,6144)
    A(f"  s_mov_b32 s{sL+2}, 0x180000"); A(f"  s_mov_b32 s{sL+3}, 0x00020000")
    A(f"  s_mov_b32 s{sEL+2}, 65536"); A(f"  s_mov_b32 s{sEL+3}, 0x00020000")
    A(f"  s_mov_b32 s{sNB}, 0")
    def issue(buf, aop):
        A(f"  s_cmp_ge_u32 s{sNB}, 16")
        A(f"  s_cselect_b32 s{sL}, s{sV}, s{sK}")
        A(f"  s_cselect_b32 s{sL+1}, s{sV+1}, s{sK+1}")
        A(f"  s_cselect_b32 s{sEL}, s{sF}, s{sE}")
        A(f"  s_cselect_b32 s{sEL+1}, s{sF+1}, s{sE+1}")
        A(f"  s_lshl_b32 s{sT0}, s{sNB}, 2")
        A(f"  s_add_u32 s{sT0}, s{sT0}, s{sROT}")
        A(f"  s_and_b32 s{sT0}, s{sT0}, 63")
        A(f"  s_mul_i32 s{sOFF}, s{sT0}, 24576")
        A(f"  s_lshl_b32 s{sOFFE}, s{sT0}, 7")
        A(f"  s_cmp_ge_u32 s{sNB}, 32")
        A(f"  s_cselect_b32 s{sOFF}, 0x180000, s{sOFF}")
        A(f"  s_cselect_b32 s{sOFFE}, 0x10000, s{sOFFE}")
        A(f"  s_add_u32 s{sNB}, s{sNB}, 1")
        A(f"  buffer_load_dwordx4 v[{aop}:{aop+3}], v{VOE}, s[{sEL}:{sEL+3}], s{sOFFE} offen")
        for t in range(8):
            for cg in range(3):
                r=buf+(cg*8+t)*4
                A(f"  buffer_load_dwordx4 v[{r}:{r+3}], v{VO0+cg}, s[{sL}:{sL+3}], s{sOFF} offen offset:{384*t}{nt}")
    for s in range(6):
        A(f"  buffer_load_dwordx4 a[{QA+4*s}:{QA+4*s+3}], v{TMP+2}, s[{sQ}:{sQ+3}], 0 offen offset:{64*s}")
    issue(X,AX)
    issue(Y,AY)
    def zero_acc():
        for i in range(96):
            A(f"  v_accvgpr_write_b32 a{i}, 0")
    zero_acc()
    def process(buf, aop):
        seq=[(cg,e) for cg in range(3) for e in range(8)]
        def perms(idx):
            cg,e=seq[idx]; w,p=e>>1,e&1
            ts=T+4*(idx%3)
            sel=sSEL1 if p else sSEL0
            for u in range(4):
                re=buf+(cg*8+2*u)*4+w
                ro=buf+(cg*8+2*u+1)*4+w
                A(f"  v_perm_b32 v{ts+u}, v{ro}, v{re}, s{sel}")
        def mfma(idx):
            cg,e=seq[idx]
            ts=T+4*(idx%3)
            acc=(cg*8+e)*4
            A(f"  v_mfma_f32_16x16x32_bf16 a[{acc}:{acc+3}], v[{aop}:{aop+3}], v[{ts}:{ts+3}], a[{acc}:{acc+3}]")
        perms(0)
        for idx in range(24):
            if idx+1<24: perms(idx+1)
            else: A("  s_nop 1")
            mfma(idx)
    A(f"  s_mov_b32 s{sPH}, 0")
    A("L_phase:")
    A(f"  s_mov_b32 s{sIT}, 0")
    A("L_loop:")
    A("  s_waitcnt vmcnt(25)")
    process(X,AX)
    issue(X,AX)
    A("  s_waitcnt vmcnt(25)")
    process(Y,AY)
    issue(Y,AY)
    A(f"  s_add_u32 s{sIT}, s{sIT}, 1")
    A(f"  s_cmp_lt_u32 s{sIT}, 8")
    A("  s_cbranch_scc1 L_loop")
    a0=TMP; a1=TMP+1
    A(f"  v_lshrrev_b32 v{a0}, 1, v{VG}")
    A(f"  v_mul_u32_u24 v{a0}, {SLOT}, v{a0}")
    A(f"  s_mul_i32 s{sT0}, s{sW}, {2*SLOT}")
    A(f"  v_add_u32 v{a0}, s{sT0}, v{a0}")
    A(f"  v_and_b32 v{a1}, 1, v{VG}")
    A(f"  v_lshl_add_u32 v{a0}, v{a1}, 4, v{a0}")
    A(f"  v_lshl_add_u32 v{a0}, v{VJ}, 5, v{a0}")
    A(f"  v_cmp_gt_u32 vcc, 8, v{VJ}")
    A(f"  v_mov_b32 v{a1+1}, -256")
    A(f"  v_mov_b32 v{a1+2}, 512")
    A(f"  s_nop 0")
    A(f"  v_cndmask_b32 v{a1}, v{a1+1}, v{a1+2}, vcc")
    A(f"  v_add_u32 v{a1}, v{a1}, v{a0}")
    A("  s_nop 7")
    A("  s_mov_b32 exec_lo, -1"); A("  s_mov_b32 exec_hi, 0")
    for e in range(8):
        acc=(0*8+e)*4
        A(f"  ds_write_b128 v{a0}, a[{acc}:{acc+3}] offset:{e*ESTR}")
    A("  s_mov_b32 exec_lo, 0"); A("  s_mov_b32 exec_hi, -1")
    for e in range(8):
        acc=(2*8+e)*4
        A(f"  ds_write_b128 v{a0}, a[{acc}:{acc+3}] offset:{e*ESTR+256}")
    A("  s_mov_b32 exec_lo, 0x00ff00ff"); A("  s_mov_b32 exec_hi, 0xff00ff00")
    for e in range(8):
        acc=(1*8+e)*4
        A(f"  ds_write_b128 v{a1}, a[{acc}:{acc+3}] offset:{e*ESTR}")
    A("  s_mov_b64 exec, -1")
    A("  s_waitcnt lgkmcnt(0)")
    A("  s_barrier")
    A(f"  s_cmp_eq_u32 s{sPH}, 1")
    A("  s_cbranch_scc1 L_vfin")
    zero_acc()
    A(f"  s_mul_i32 s{sT0}, s{sW}, {2*ESTR}")
    A(f"  v_lshlrev_b32 v{a0}, 4, v{VL}")
    A(f"  v_add_u32 v{a0}, s{sT0}, v{a0}")
    A("  s_mov_b32 exec_lo, -1"); A("  s_mov_b32 exec_hi, 0xffff")
    R=TMP+2
    S0=T
    for ee in range(2):
        for s in range(8):
            A(f"  ds_read_b128 v[{R+4*s}:{R+4*s+3}], v{a0} offset:{s*SLOT+ee*ESTR}")
        for s in range(1,8):
            A(f"  s_waitcnt lgkmcnt({7-s})")
            for i in range(4):
                if s==1: A(f"  v_add_f32 v{S0+4*ee+i}, v{R+i}, v{R+4+i}")
                else:    A(f"  v_add_f32 v{S0+4*ee+i}, v{S0+4*ee+i}, v{R+4*s+i}")
    A(f"  v_and_b32 v{a1}, 1, v{VL}")
    A(f"  v_mul_u32_u24 v{a1}, {4*KPS}, v{a1}")
    A(f"  v_lshrrev_b32 v{a0}, 1, v{VL}")
    A(f"  v_lshl_add_u32 v{a1}, v{a0}, 4, v{a1}")
    A(f"  s_lshl_b32 s{sT0}, s{sW}, 2")
    A(f"  v_add_u32 v{a1}, s{sT0}, v{a1}")
    for i in range(4):
        A(f"  v_cvt_pk_bf16_f32 v{R+i}, v{S0+i}, v{S0+4+i}")
    for i in range(4):
        A(f"  ds_write_b32 v{a1}, v{R+i} offset:{KPB+i*KPS}")
    A("  s_mov_b64 exec, -1")
    A("  s_waitcnt lgkmcnt(0)")
    A("  s_barrier")
    A(f"  v_and_b32 v{a0}, 7, v{VJ}")
    A(f"  v_mul_u32_u24 v{a0}, {KPS}, v{a0}")
    A(f"  v_lshl_add_u32 v{a0}, v{VG}, 4, v{a0}")
    for s in range(6):
        A(f"  ds_read_b128 v[{R+4*s}:{R+4*s+3}], v{a0} offset:{KPB+64*s}")
    SS=T
    for s in range(6):
        A(f"  s_waitcnt lgkmcnt({5-s})")
        c = "0" if s==0 else f"v[{SS}:{SS+3}]"
        A(f"  v_mfma_f32_16x16x32_bf16 v[{SS}:{SS+3}], v[{R+4*s}:{R+4*s+3}], a[{QA+4*s}:{QA+4*s+3}], {c}")
    A("  s_nop 7")
    A("  s_nop 1")
    t0=TMP; t1=TMP+1
    def round_bf16():
        A(f"  v_cvt_pk_bf16_f32 v{t0}, v{SS}, v{SS+1}")
        A(f"  v_cvt_pk_bf16_f32 v{t1}, v{SS+2}, v{SS+3}")
        A(f"  v_lshlrev_b32 v{SS}, 16, v{t0}")
        A(f"  v_and_b32 v{SS+1}, 0xffff0000, v{t0}")
        A(f"  v_lshlrev_b32 v{SS+2}, 16, v{t1}")
        A(f"  v_and_b32 v{SS+3}, 0xffff0000, v{t1}")
    round_bf16()
    for i in range(4):
        A(f"  v_mul_f32 v{SS+i}, 0x3d93cd3a, v{SS+i}")
    round_bf16()
    A(f"  v_max_f32 v{t0}, v{SS}, v{SS+1}")
    A(f"  v_max3_f32 v{t0}, v{SS+2}, v{SS+3}, v{t0}")
    A(f"  ds_swizzle_b32 v{t1}, v{t0} offset:0x401F")
    A("  s_waitcnt lgkmcnt(0)")
    A(f"  v_max_f32 v{t0}, v{t0}, v{t1}")
    for i in range(4):
        A(f"  v_sub_f32 v{SS+i}, v{SS+i}, v{t0}")
    for i in range(4):
        A(f"  v_mul_f32 v{SS+i}, 0x3fb8aa3b, v{SS+i}")
    for i in range(4):
        A(f"  v_exp_f32 v{SS+i}, v{SS+i}")
    A("  s_nop 0")
    A(f"  v_add_f32 v{t0}, v{SS}, v{SS+1}")
    A(f"  v_add_f32 v{t1}, v{SS+2}, v{SS+3}")
    A(f"  v_add_f32 v{t0}, v{t0}, v{t1}")
    A(f"  ds_swizzle_b32 v{t1}, v{t0} offset:0x401F")
    A("  s_waitcnt lgkmcnt(0)")
    A(f"  v_add_f32 v{t0}, v{t0}, v{t1}")
    A(f"  v_rcp_f32 v{t0}, v{t0}")
    A("  s_nop 0")
    for i in range(4):
        A(f"  v_mul_f32 v{SS+i}, v{SS+i}, v{t0}")
    A(f"  v_cvt_pk_bf16_f32 v{PT}, v{SS}, v{SS+1}")
    A(f"  v_cvt_pk_bf16_f32 v{PT+1}, v{SS+2}, v{SS+3}")
    A("  s_mov_b32 exec_lo, 0")
    A(f"  v_mov_b32 v{PT}, 0")
    A(f"  v_mov_b32 v{PT+1}, 0")
    A("  s_mov_b64 exec, -1")
    A(f"  s_mov_b32 s{sPH}, 1")
    A("  s_branch L_phase")
    A("L_vfin:")
    A("  s_waitcnt vmcnt(0)")
    A(f"  v_and_b32 v{a0}, 7, v{VJ}")
    A(f"  v_mul_u32_u24 v{a0}, {ESTR}, v{a0}")
    A(f"  v_lshrrev_b32 v{a1}, 3, v{VJ}")
    A(f"  v_lshl_add_u32 v{a0}, v{a1}, 5, v{a0}")
    A(f"  v_and_b32 v{a1}, 1, v{VG}")
    A(f"  v_lshl_add_u32 v{a0}, v{a1}, 4, v{a0}")
    A(f"  v_lshrrev_b32 v{a1}, 1, v{VG}")
    A(f"  v_mul_u32_u24 v{a1}, {SLOT}, v{a1}")
    A(f"  v_add_u32 v{a0}, v{a0}, v{a1}")
    A(f"  s_mul_i32 s{sT0}, s{sW}, {3*64}")
    A(f"  v_add_u32 v{a0}, s{sT0}, v{a0}")
    for tau in range(3):
        for sg in range(4):
            r=X+(tau*4+sg)*4
            A(f"  ds_read_b128 v[{r}:{r+3}], v{a0} offset:{sg*2*SLOT+tau*64}")
    A(f"  v_mul_u32_u24 v{a1}, 384, v{VJ}")
    A(f"  v_lshl_add_u32 v{a1}, v{VG}, 3, v{a1}")
    A(f"  s_mul_i32 s{sT0}, s{sW}, 96")
    A(f"  v_add_u32 v{a1}, s{sT0}, v{a1}")
    Z=Y
    for tau in range(3):
        A(f"  s_waitcnt lgkmcnt({(2-tau)*4})")
        r=X+tau*16
        for i in range(4):
            A(f"  v_add_f32 v{r+i}, v{r+i}, v{r+4+i}")
            A(f"  v_add_f32 v{r+8+i}, v{r+8+i}, v{r+12+i}")
        for i in range(4):
            A(f"  v_add_f32 v{r+i}, v{r+i}, v{r+8+i}")
        for i in range(4):
            A(f"  v_mov_b32 v{r+4+i}, v{r+i}")
        A("  s_nop 1")
        for i in range(4):
            A(f"  v_permlane32_swap_b32 v{r+i}, v{r+4+i}")
        A("  s_nop 1")
        for i in range(4):
            A(f"  v_add_f32 v{r+i}, v{r+i}, v{r+4+i}")
        A(f"  v_cvt_pk_bf16_f32 v{r+8}, v{r}, v{r+1}")
        A(f"  v_cvt_pk_bf16_f32 v{r+9}, v{r+2}, v{r+3}")
        A("  s_nop 1")
        A(f"  v_mfma_f32_16x16x16_bf16 v[{Z+4*tau}:{Z+4*tau+3}], v[{r+8}:{r+9}], v[{PT}:{PT+1}], 0")
    A("  s_nop 7")
    for tau in range(3):
        z=Z+4*tau
        A(f"  v_cvt_pk_bf16_f32 v{Z+16+2*tau}, v{z}, v{z+1}")
        A(f"  v_cvt_pk_bf16_f32 v{Z+16+2*tau+1}, v{z+2}, v{z+3}")
    for tau in range(3):
        A(f"  buffer_store_dwordx2 v[{Z+16+2*tau}:{Z+16+2*tau+1}], v{a1}, s[{sO}:{sO+3}], 0 offen offset:{32*tau}")
    A("L_done:")
    A("  s_endpgm")
    A('.section .rodata,"a"'); A(".p2align 6"); A(f".amdhsa_kernel {KN}")
    A(f"  .amdhsa_next_free_vgpr {256+120}"); A("  .amdhsa_next_free_sgpr 64"); A(f"  .amdhsa_accum_offset 256")
    A("  .amdhsa_group_segment_fixed_size 0"); A("  .amdhsa_kernarg_size 64"); A("  .amdhsa_user_sgpr_count 2"); A("  .amdhsa_user_sgpr_kernarg_segment_ptr 1"); A("  .amdhsa_system_sgpr_workgroup_id_x 1"); A(".end_amdhsa_kernel")
    return "\n".join(L)+"\n", LDS
if __name__=="__main__":
    s,lds=gen()
    out=sys.argv[1] if len(sys.argv)>1 else "standalone__low_rank_proj_linformer__sampling.s"
    open(out,"w").write(s)
    print("wrote",out,"lds",lds)
```

```python
import sys
KN="standalone__low_rank_proj_linformer__sampling_kernel"

HEADER = """; Kernarg layout for this problem (64 bytes, ptrs only, base s[0:1]):
"""

def gen(rotmul=13, nt=" nt", stamps=False, steal=True, T=32, R=4, px=3, maxpoll=400000, cgmajor=False, qit=1, elast=True, dbgtime=False, midbar=0, ostore='', perm=1):
    W=4
    L=[]
    A=L.append
    ESTR=800
    SLOT=8*ESTR
    REG=8*SLOT
    KPB=0; KPS=400
    WRD=3200
    PTB=3328
    QB=3840
    REGK=QB+6144
    REGA=REGK+REG
    REGB=REGA+REG
    LDS=REGB+(REG if steal else 0)
    NSV=(64-T)//W
    NS=16+NSV
    assert (64-T)%W==0 and NSV>=4
    A(HEADER.rstrip("\n"))
    A(f"; @launch grid=(256,1,1) block=({W*64},1,1) lds={LDS}")
    A('.amdgcn_target "amdgcn-amd-amdhsa--gfx950"')
    A(".text"); A(f".globl {KN}"); A(".p2align 8"); A(f".type {KN},@function"); A(f"{KN}:")
    X=0; Y=96
    TT=192
    AX=204; AY=208
    VO0=212; VOE=215
    PT=216
    VL=218; VG=219; VJ=220
    VZ=221; VC=222; VF=223
    TMP=224
    sK=8; sV=12; sE=16; sF=20; sQ=24; sO=28; sL=32; sEL=36; sWS=40
    sVP=44
    sW=46; sROT=47; sROTP=48; sN=49; sOFF=50; sOFFE=51; sSEL0=52; sSEL1=53; sIT=54
    sT0=55; sT1=56; sT2=57
    sMODE=58; sCM=59; sOWN=60; sEMP=61; sCAN=62; sTAG=(63,64); sDUMP=65; sDOFF=66; sZERO=67
    sHO=68; sHP=69; sCO=70; sCP=71; sBH=72; sBP=73
    sRET=74
    sST=76
    def stamp(slot):
        if not stamps: return
        A(f"  s_memrealtime s[{sST+2*slot}:{sST+2*slot+1}]")
        A(f"  s_waitcnt lgkmcnt(0)")
    A("  s_cmp_ge_u32 s2, 256")
    A("  s_cbranch_scc1 L_done")
    A("  s_load_dwordx8 s[88:95], s[0:1], 0")
    A("  s_load_dwordx4 s[96:99], s[0:1], 32")
    A("  s_load_dwordx4 s[4:7], s[0:1], 48")
    if stamps or dbgtime:
        A(f"  s_memrealtime s[{sST}:{sST+1}]")
    if perm==1:
        A("  s_and_b32 s3, s2, 7")
        A(f"  s_lshr_b32 s{sBH}, s2, 3")
        A(f"  s_xor_b32 s{sBP}, s3, {px}")
        A("  s_lshl_b32 s3, s3, 5")
        A(f"  s_lshl_b32 s{sBP}, s{sBP}, 5")
        A(f"  s_or_b32 s{sBP}, s{sBP}, s{sBH}")
        A(f"  s_or_b32 s{sBH}, s{sBH}, s3")
    else:
        A(f"  s_mov_b32 s{sBH}, s2")
        A(f"  s_xor_b32 s{sBP}, s2, {px}")
    A(f"  v_and_b32 v{VL}, 63, v0")
    A(f"  v_lshrrev_b32 v{TMP}, 6, v0")
    A(f"  v_lshrrev_b32 v{VG}, 4, v{VL}")
    A(f"  v_readfirstlane_b32 s{sW}, v{TMP}")
    A(f"  v_and_b32 v{VJ}, 15, v{VL}")
    A(f"  v_lshlrev_b32 v{TMP+3}, 4, v0")
    A(f"  v_mul_u32_u24 v{VO0}, 6144, v{VG}")
    A(f"  v_lshl_add_u32 v{VO0}, v{VJ}, 4, v{VO0}")
    A(f"  v_cmp_gt_u32 vcc, 8, v{VJ}")
    A(f"  v_mov_b32 v{TMP}, 2944")
    A(f"  v_mov_b32 v{TMP+1}, 256")
    A(f"  v_add_u32 v{VO0+2}, 3200, v{VO0}")
    A(f"  v_cndmask_b32 v{VO0+1}, v{TMP}, v{TMP+1}, vcc")
    A(f"  v_add_u32 v{VO0+1}, v{VO0+1}, v{VO0}")
    A(f"  v_and_b32 v{TMP}, 7, v{VJ}")
    A(f"  v_lshlrev_b32 v{VOE}, 13, v{TMP}")
    A(f"  v_lshl_add_u32 v{VOE}, v{VG}, 5, v{VOE}")
    A(f"  v_lshrrev_b32 v{TMP}, 3, v{VJ}")
    A(f"  v_lshl_add_u32 v{VOE}, v{TMP}, 4, v{VOE}")
    A(f"  v_mov_b32 v{VZ}, 0")
    A(f"  v_mov_b32 v{VF}, 0")
    A(f"  s_mul_i32 s{sT0}, s{sBH}, 0x180000")
    A(f"  s_mul_i32 s{sROT}, s{sBH}, {rotmul}")
    A(f"  s_add_u32 s{sT1}, s{sW}, s{sROT}")
    A(f"  s_and_b32 s{sT2}, s{sT1}, 63")
    A(f"  s_mul_i32 s{sOFF}, s{sT2}, 24576")
    A(f"  s_lshl_b32 s{sOFFE}, s{sT2}, 7")
    A(f"  s_mov_b32 s{sL+2}, 0x180000"); A(f"  s_mov_b32 s{sL+3}, 0x00020000")
    A(f"  s_mov_b32 s{sEL+2}, 65536"); A(f"  s_mov_b32 s{sEL+3}, 0x00020000")
    A("  s_waitcnt lgkmcnt(0)")
    A(f"  s_add_u32 s{sL}, s90, s{sT0}"); A(f"  s_addc_u32 s{sL+1}, s91, 0")
    A(f"  s_mov_b32 s{sEL}, s94"); A(f"  s_mov_b32 s{sEL+1}, s95")
    def loads(buf, aop):
        def eload(): A(f"  buffer_load_dwordx4 v[{aop}:{aop+3}], v{VOE}, s[{sEL}:{sEL+3}], s{sOFFE} offen")
        if not elast: eload()
        order=[(t,cg) for t in range(8) for cg in range(3)] if not cgmajor else [(t,cg) for cg in range(3) for t in range(8)]
        for t,cg in order:
            r=buf+(cg*8+t)*4
            A(f"  buffer_load_dwordx4 v[{r}:{r+3}], v{VO0+cg}, s[{sL}:{sL+3}], s{sOFF} offen offset:{384*t}{nt}")
        if elast: eload()
    loads(X,AX)
    A(f"  s_add_u32 s{sT1}, s{sT1}, 4")
    A(f"  s_and_b32 s{sT2}, s{sT1}, 63")
    A(f"  s_mul_i32 s{sOFF}, s{sT2}, 24576")
    A(f"  s_lshl_b32 s{sOFFE}, s{sT2}, 7")
    loads(Y,AY)
    A(f"  s_mov_b32 s{sN}, 2")
    def srd(d, lo, off, size):
        if off is None:
            A(f"  s_mov_b32 s{d}, s{lo}"); A(f"  s_mov_b32 s{d+1}, s{lo+1}")
        else:
            A(f"  s_add_u32 s{d}, s{lo}, s{off}"); A(f"  s_addc_u32 s{d+1}, s{lo+1}, 0")
        A(f"  s_mov_b32 s{d+2}, {size}"); A(f"  s_mov_b32 s{d+3}, 0x00020000")
    A(f"  s_mul_i32 s{sT1}, s{sBH}, 6144")
    A(f"  s_mul_i32 s{sT2}, s{sBP}, 0x180000")
    srd(sK,90,sT0,0x180000)
    srd(sV,92,sT0,0x180000)
    srd(sE,94,None,65536)
    srd(sF,96,None,65536)
    srd(sQ,88,sT1,6144)
    srd(sO,98,sT1,6144)
    srd(sWS,6,None,0x180000+256*256)
    A(f"  s_add_u32 s{sVP}, s92, s{sT2}"); A(f"  s_addc_u32 s{sVP+1}, s93, 0")
    A(f"  s_mov_b32 s{sSEL0}, 0x05040100")
    A(f"  s_mov_b32 s{sSEL1}, 0x07060302")
    A(f"  s_mul_i32 s{sROTP}, s{sBP}, {rotmul}")
    A(f"  s_mul_i32 s{sHO}, s{sBH}, 6144")
    A(f"  s_mul_i32 s{sHP}, s{sBP}, 6144")
    A(f"  s_lshl_b32 s{sCO}, s{sBH}, 8")
    A(f"  s_lshl_b32 s{sCP}, s{sBP}, 8")
    A(f"  s_add_u32 s{sCO}, s{sCO}, 0x180000")
    A(f"  s_add_u32 s{sCP}, s{sCP}, 0x180000")
    if steal:
        A(f"  s_cmp_lg_u32 s{sW}, 0")
        A("  s_cbranch_scc1 L_noinit")
        A(f"  v_lshlrev_b32 v{TMP+8}, 2, v{VL}")
        A("  s_mov_b64 exec, 0xff")
        A(f"  buffer_store_dword v{VZ}, v{TMP+8}, s[{sWS}:{sWS+3}], s{sCO} offen sc0 sc1")
        A("  s_mov_b64 exec, -1")
        A("L_noinit:")
    for i in range(4): A(f"  v_mov_b32 v{TMP+4+i}, 0")
    A(f"  ds_write_b128 v{VZ}, v[{TMP+4}:{TMP+7}] offset:{WRD+32}")
    if steal:
        A(f"  v_add_u32 v{TMP+3}, {REGB}, v{TMP+3}")
        for k in range(12):
            A(f"  ds_write_b128 v{TMP+3}, v[{TMP+4}:{TMP+7}] offset:{k*4096}")
        A(f"  s_cmp_ge_u32 s{sW}, 2")
        A("  s_cbranch_scc1 L_nz13")
        A(f"  ds_write_b128 v{TMP+3}, v[{TMP+4}:{TMP+7}] offset:{12*4096}")
        A("L_nz13:")
    def zero_acc():
        for i in range(96):
            A(f"  v_accvgpr_write_b32 a{i}, 0")
    zero_acc()
    A("  s_waitcnt lgkmcnt(0)")
    A("  s_barrier")
    def process(buf, aop):
        seq=[(cg,e) for cg in range(3) for e in range(8)]
        def perms(idx):
            cg,e=seq[idx]; w,p=e>>1,e&1
            ts=TT+4*(idx%3)
            sel=sSEL1 if p else sSEL0
            for u in range(4):
                re=buf+(cg*8+2*u)*4+w
                ro=buf+(cg*8+2*u+1)*4+w
                A(f"  v_perm_b32 v{ts+u}, v{ro}, v{re}, s{sel}")
        def mfma(idx):
            cg,e=seq[idx]
            ts=TT+4*(idx%3)
            acc=(cg*8+e)*4
            A(f"  v_mfma_f32_16x16x32_bf16 a[{acc}:{acc+3}], v[{aop}:{aop+3}], v[{ts}:{ts+3}], a[{acc}:{acc+3}]")
        perms(0)
        for idx in range(24):
            if idx+1<24: perms(idx+1)
            else: A("  s_nop 1")
            mfma(idx)
    def static_addr():
        A(f"  s_cmp_ge_u32 s{sN}, 16")
        A(f"  s_cselect_b32 s{sL}, s{sV}, s{sK}")
        A(f"  s_cselect_b32 s{sL+1}, s{sV+1}, s{sK+1}")
        A(f"  s_cselect_b32 s{sEL}, s{sF}, s{sE}")
        A(f"  s_cselect_b32 s{sEL+1}, s{sF+1}, s{sE+1}")
        A(f"  s_lshl_b32 s{sT0}, s{sN}, 2")
        A(f"  s_add_u32 s{sT0}, s{sT0}, s{sW}")
        A(f"  s_add_u32 s{sT0}, s{sT0}, s{sROT}")
        A(f"  s_and_b32 s{sT0}, s{sT0}, 63")
        A(f"  s_mul_i32 s{sOFF}, s{sT0}, 24576")
        A(f"  s_lshl_b32 s{sOFFE}, s{sT0}, 7")
    A(f"  s_mov_b32 s{sIT}, 0")
    A("  s_waitcnt vmcnt(25)")
    if stamps: stamp(1)
    A("  s_branch L_kfirst")
    A("L_kloop:")
    A("  s_waitcnt vmcnt(25)")
    A("L_kfirst:")
    process(X,AX)
    static_addr(); A(f"  s_add_u32 s{sN}, s{sN}, 1"); loads(X,AX)
    A("  s_waitcnt vmcnt(25)")
    A(f"  s_cmp_lg_u32 s{sIT}, {qit}")
    A("  s_cbranch_scc1 L_noside")
    if steal:
        A(f"  s_cmp_lg_u32 s{sW}, 0")
        A("  s_cbranch_scc1 L_nombx")
        A("  s_mov_b64 exec, 1")
        A(f"  v_mov_b32 v{TMP}, 1")
        A(f"  buffer_store_dword v{TMP}, v{VZ}, s[{sWS}:{sWS+3}], s{sCP} offen offset:4 sc0 sc1")
        A("  s_mov_b64 exec, -1")
        A("L_nombx:")
    A(f"  s_cmp_lg_u32 s{sW}, 1")
    A("  s_cbranch_scc1 L_noside")
    A(f"  v_lshlrev_b32 v{TMP}, 4, v{VL}")
    A(f"  s_mov_b32 m0, {QB}")
    A(f"  s_mov_b32 s{sT0}, 4096")
    for k in range(4):
        A(f"  buffer_load_dwordx4 v{TMP}, s[{sQ}:{sQ+3}], 0 offen offset:{1024*k} nt lds")
    A(f"  s_mov_b32 m0, {QB+4096}")
    A("  s_nop 0")
    for k in range(2):
        A(f"  buffer_load_dwordx4 v{TMP}, s[{sQ}:{sQ+3}], s{sT0} offen offset:{1024*k} nt lds")
    A("L_noside:")
    process(Y,AY)
    static_addr(); A(f"  s_add_u32 s{sN}, s{sN}, 1"); loads(Y,AY)
    A(f"  s_add_u32 s{sIT}, s{sIT}, 1")
    A(f"  s_cmp_lt_u32 s{sIT}, 8")
    A("  s_cbranch_scc1 L_kloop")
    stamp(2)
    A(f"  s_mov_b32 s{sDOFF}, {REGK}")
    A(f"  s_mov_b32 s{sZERO}, 1")
    A(f"  s_call_b64 s[{sRET}:{sRET+1}], L_dump")
    A(f"  v_mov_b32 v{TMP}, 1")
    A(f"  s_mov_b64 exec, 1")
    A(f"  ds_add_rtn_u32 v{TMP+1}, v{VZ}, v{TMP} offset:{WRD+32}")
    A(f"  s_mov_b64 exec, -1")
    A("  s_waitcnt lgkmcnt(0)")
    A(f"  v_readfirstlane_b32 s{sT0}, v{TMP+1}")
    A(f"  s_cmp_lg_u32 s{sT0}, 3")
    A("  s_cbranch_scc1 L_nokfin")
    R_=TMP; S0=TT; b0=TT+8; b1=TT+9
    A(f"  v_lshlrev_b32 v{b0}, 4, v{VL}")
    A(f"  v_add_u32 v{b0}, {REGK}, v{b0}")
    A(f"  v_and_b32 v{b1}, 1, v{VL}")
    A(f"  v_mul_u32_u24 v{b1}, {4*KPS}, v{b1}")
    A(f"  v_lshrrev_b32 v{TT+10}, 1, v{VL}")
    A(f"  v_lshl_add_u32 v{b1}, v{TT+10}, 4, v{b1}")
    A(f"  s_mov_b32 s{sIT}, 0")
    A("  s_mov_b32 exec_lo, -1"); A("  s_mov_b32 exec_hi, 0xffff")
    A("L_kf1:")
    for ee in range(2):
        for s in range(8):
            A(f"  ds_read_b128 v[{R_+4*s}:{R_+4*s+3}], v{b0} offset:{s*SLOT+ee*ESTR}")
        for s in range(1,8):
            A(f"  s_waitcnt lgkmcnt({7-s})")
            for i in range(4):
                if s==1: A(f"  v_add_f32 v{S0+4*ee+i}, v{R_+i}, v{R_+4+i}")
                else:    A(f"  v_add_f32 v{S0+4*ee+i}, v{S0+4*ee+i}, v{R_+4*s+i}")
    for i in range(4):
        A(f"  v_cvt_pk_bf16_f32 v{R_+i}, v{S0+i}, v{S0+4+i}")
    for i in range(4):
        A(f"  ds_write_b32 v{b1}, v{R_+i} offset:{KPB+i*KPS}")
    A(f"  v_add_u32 v{b0}, {2*ESTR}, v{b0}")
    A(f"  v_add_u32 v{b1}, 4, v{b1}")
    A(f"  s_add_u32 s{sIT}, s{sIT}, 1")
    A(f"  s_cmp_lt_u32 s{sIT}, 4")
    A("  s_cbranch_scc1 L_kf1")
    A("  s_mov_b64 exec, -1")
    A(f"  v_and_b32 v{b0}, 7, v{VJ}")
    A(f"  v_mul_u32_u24 v{b0}, {KPS}, v{b0}")
    A(f"  v_lshl_add_u32 v{b0}, v{VG}, 4, v{b0}")
    A(f"  v_mul_u32_u24 v{b1}, 384, v{VJ}")
    A(f"  v_lshl_add_u32 v{b1}, v{VG}, 4, v{b1}")
    A("  s_waitcnt lgkmcnt(0)")
    SS=TT
    for half in range(2):
        for s in range(3):
            sg=half*3+s
            A(f"  ds_read_b128 v[{R_+8*s}:{R_+8*s+3}], v{b0} offset:{KPB+64*sg}")
            A(f"  ds_read_b128 v[{R_+8*s+4}:{R_+8*s+7}], v{b1} offset:{QB+64*sg}")
        for s in range(3):
            A(f"  s_waitcnt lgkmcnt({4-2*s})")
            c = "0" if (half==0 and s==0) else f"v[{SS}:{SS+3}]"
            A(f"  v_mfma_f32_16x16x32_bf16 v[{SS}:{SS+3}], v[{R_+8*s}:{R_+8*s+3}], v[{R_+8*s+4}:{R_+8*s+7}], {c}")
    A("  s_nop 7")
    A("  s_nop 1")
    t0=TMP; t1=TMP+1
    def round_bf16():
        A(f"  v_cvt_pk_bf16_f32 v{t0}, v{SS}, v{SS+1}")
        A(f"  v_cvt_pk_bf16_f32 v{t1}, v{SS+2}, v{SS+3}")
        A(f"  v_lshlrev_b32 v{SS}, 16, v{t0}")
        A(f"  v_and_b32 v{SS+1}, 0xffff0000, v{t0}")
        A(f"  v_lshlrev_b32 v{SS+2}, 16, v{t1}")
        A(f"  v_and_b32 v{SS+3}, 0xffff0000, v{t1}")
    round_bf16()
    for i in range(4):
        A(f"  v_mul_f32 v{SS+i}, 0x3d93cd3a, v{SS+i}")
    round_bf16()
    A(f"  v_max_f32 v{t0}, v{SS}, v{SS+1}")
    A(f"  v_max3_f32 v{t0}, v{SS+2}, v{SS+3}, v{t0}")
    A(f"  ds_swizzle_b32 v{t1}, v{t0} offset:0x401F")
    A("  s_waitcnt lgkmcnt(0)")
    A(f"  v_max_f32 v{t0}, v{t0}, v{t1}")
    for i in range(4):
        A(f"  v_sub_f32 v{SS+i}, v{SS+i}, v{t0}")
    for i in range(4):
        A(f"  v_mul_f32 v{SS+i}, 0x3fb8aa3b, v{SS+i}")
    for i in range(4):
        A(f"  v_exp_f32 v{SS+i}, v{SS+i}")
    A("  s_nop 0")
    A(f"  v_add_f32 v{t0}, v{SS}, v{SS+1}")
    A(f"  v_add_f32 v{t1}, v{SS+2}, v{SS+3}")
    A(f"  v_add_f32 v{t0}, v{t0}, v{t1}")
    A(f"  ds_swizzle_b32 v{t1}, v{t0} offset:0x401F")
    A("  s_waitcnt lgkmcnt(0)")
    A(f"  v_add_f32 v{t0}, v{t0}, v{t1}")
    A(f"  v_rcp_f32 v{t0}, v{t0}")
    A("  s_nop 0")
    for i in range(4):
        A(f"  v_mul_f32 v{SS+i}, v{SS+i}, v{t0}")
    A(f"  v_cvt_pk_bf16_f32 v{PT}, v{SS}, v{SS+1}")
    A(f"  v_cvt_pk_bf16_f32 v{PT+1}, v{SS+2}, v{SS+3}")
    A("  s_mov_b32 exec_lo, 0")
    A(f"  v_mov_b32 v{PT}, 0")
    A(f"  v_mov_b32 v{PT+1}, 0")
    A("  s_mov_b64 exec, -1")
    A(f"  v_lshlrev_b32 v{t0}, 3, v{VL}")
    A(f"  ds_write_b64 v{t0}, v[{PT}:{PT+1}] offset:{PTB}")
    A("L_nokfin:")
    if midbar==1:
        A("  s_barrier")
    A(f"  s_mov_b32 s{sMODE}, 0"); A(f"  s_mov_b32 s{sCM}, 2"); A(f"  s_mov_b32 s{sOWN}, 0"); A(f"  s_mov_b32 s{sEMP}, 0")
    A(f"  s_mov_b32 s{sCAN}, 0"); A(f"  s_mov_b32 s{sTAG[0]}, 0"); A(f"  s_mov_b32 s{sTAG[1]}, 0"); A(f"  s_mov_b32 s{sDUMP}, 0")
    NFLAG=NS-2
    def vstep(bi, buf, aop):
        u=f"{bi}"
        tag=sTAG[bi]
        A(f"  v_readfirstlane_b32 s{sT1}, v{VF}")
        A(f"  s_or_b32 s{sCAN}, s{sCAN}, s{sT1}")
        A(f"  s_cmp_lt_u32 s{sN}, {NS}")
        A(f"  s_cbranch_scc0 L_dyn{u}")
        static_addr()
        A(f"  s_mov_b32 s{tag}, 0")
        A(f"  s_branch L_iss{u}")
        A(f"L_dyn{u}:")
        A(f"  v_readfirstlane_b32 s{sT2}, v{VC}")
        A(f"  s_cmp_eq_u32 s{sCM}, 2")
        A(f"  s_cbranch_scc1 L_empty{u}")
        A(f"  s_cmp_lt_u32 s{sT2}, {T}")
        A(f"  s_cbranch_scc1 L_ok{u}")
        A(f"  s_cmp_eq_u32 s{sCM}, 0")
        A(f"  s_cselect_b32 s{sT1}, s{sCAN}, 0")
        A(f"  s_cmp_lg_u32 s{sT1}, 0")
        A(f"  s_cselect_b32 s{sMODE}, 1, 2")
        A(f"L_empty{u}:")
        A(f"  s_mov_b32 s{sOFF}, 0x180000")
        A(f"  s_mov_b32 s{sOFFE}, 0x10000")
        A(f"  s_mov_b32 s{tag}, 2")
        A(f"  s_add_u32 s{sEMP}, s{sEMP}, 1")
        A(f"  s_branch L_iss{u}")
        A(f"L_ok{u}:")
        A(f"  s_mov_b32 s{sEMP}, 0")
        A(f"  s_mov_b32 s{tag}, s{sCM}")
        A(f"  s_cmp_eq_u32 s{sCM}, 0")
        A(f"  s_cselect_b32 s{sL}, s{sV}, s{sVP}")
        A(f"  s_cselect_b32 s{sL+1}, s{sV+1}, s{sVP+1}")
        A(f"  s_cselect_b32 s{sT0}, s{sROT}, s{sROTP}")
        A(f"  s_cselect_b32 s{sT1}, 1, 0")
        A(f"  s_add_u32 s{sOWN}, s{sOWN}, s{sT1}")
        A(f"  s_cmp_eq_u32 s{sCM}, 1")
        A(f"  s_cbranch_scc0 L_ok2{u}")
        A(f"  s_cmp_ge_u32 s{sT2}, {T-R-1}")
        A(f"  s_cselect_b32 s{sMODE}, 2, s{sMODE}")
        A(f"L_ok2{u}:")
        A(f"  s_add_u32 s{sT0}, s{sT0}, s{sT2}")
        A(f"  s_add_u32 s{sT0}, s{sT0}, {64-T}")
        A(f"  s_and_b32 s{sT0}, s{sT0}, 63")
        A(f"  s_mul_i32 s{sOFF}, s{sT0}, 24576")
        A(f"  s_lshl_b32 s{sOFFE}, s{sT0}, 7")
        A(f"L_iss{u}:")
        A(f"  s_add_u32 s{sN}, s{sN}, 1")
        A(f"  s_cmp_lt_u32 s{sN}, {NS}")
        A(f"  s_cbranch_scc0 L_clm{u}")
        A(f"  s_mov_b32 s{sCM}, 2")
        A(f"  s_cmp_eq_u32 s{sN}, {NFLAG}")
        A(f"  s_cselect_b32 s{sT1}, s{sCO}, 0x10000000")
        A(f"  buffer_load_dword v{VF}, v{VZ}, s[{sWS}:{sWS+3}], s{sT1} offen offset:4 sc0 sc1")
        A(f"  s_branch L_ld{u}")
        A(f"L_clm{u}:")
        A(f"  s_mov_b32 s{sCM}, s{sMODE}")
        A(f"  s_cmp_eq_u32 s{sCM}, 0")
        A(f"  s_cselect_b32 s{sT1}, s{sCO}, s{sCP}")
        A(f"  s_cmp_eq_u32 s{sCM}, 2")
        A(f"  s_cselect_b32 s{sT1}, 0x10000000, s{sT1}")
        A(f"  v_mov_b32 v{VC}, 1")
        A(f"  s_mov_b64 exec, 1")
        A(f"  buffer_atomic_add v{VC}, v{VZ}, s[{sWS}:{sWS+3}], s{sT1} offen sc0 sc1")
        A(f"  s_mov_b64 exec, -1")
        A(f"L_ld{u}:")
        loads(buf,aop)
    def vproc(bi, buf, aop):
        u=f"{bi}"
        tag=sTAG[bi]
        A(f"  s_cmp_eq_u32 s{tag}, 2")
        A(f"  s_cbranch_scc1 L_skip{u}")
        A(f"  s_cmp_eq_u32 s{tag}, 1")
        A(f"  s_cbranch_scc0 L_go{u}")
        A(f"  s_cmp_eq_u32 s{sDUMP}, 0")
        A(f"  s_cbranch_scc0 L_go{u}")
        A(f"  s_mov_b32 s{sDUMP}, 1")
        A(f"  s_mov_b32 s{sDOFF}, {REGA}")
        A(f"  s_mov_b32 s{sZERO}, 1")
        A(f"  s_call_b64 s[{sRET}:{sRET+1}], L_dump")
        A(f"L_go{u}:")
        process(buf,aop)
        A(f"L_skip{u}:")
    if steal:
        A("L_vloop:")
        A("  s_waitcnt vmcnt(25)")
        vproc(0,X,AX)
        vstep(0,X,AX)
        A("  s_waitcnt vmcnt(25)")
        vproc(1,Y,AY)
        vstep(1,Y,AY)
        A(f"  s_cmp_eq_u32 s{sMODE}, 2")
        A("  s_cbranch_scc0 L_vloop")
        A(f"  s_cmp_lt_u32 s{sEMP}, 2")
        A("  s_cbranch_scc1 L_vloop")
    else:
        A(f"  s_mov_b32 s{sIT}, 0")
        A("L_vloop:")
        for buf,aop in ((X,AX),(Y,AY)):
            A("  s_waitcnt vmcnt(25)")
            process(buf,aop)
            static_addr()
            A(f"  s_add_u32 s{sN}, s{sN}, 1")
            loads(buf,aop)
        A(f"  s_add_u32 s{sIT}, s{sIT}, 1")
        A(f"  s_cmp_lt_u32 s{sIT}, 7")
        A("  s_cbranch_scc1 L_vloop")
        A("  s_waitcnt vmcnt(25)")
        process(X,AX)
        A("  s_waitcnt vmcnt(0)")
        process(Y,AY)
        A("  s_nop 7")
    stamp(3)
    A(f"  s_mul_i32 s{sDOFF}, s{sDUMP}, {REGB-REGA}")
    A(f"  s_add_u32 s{sDOFF}, s{sDOFF}, {REGA}")
    A(f"  s_mov_b32 s{sZERO}, 0")
    A(f"  s_call_b64 s[{sRET}:{sRET+1}], L_dump")
    a0=TMP; a1=TMP+1
    if steal:
        A(f"  s_lshl_b32 s{sT0}, s{sW}, 2")
        A(f"  v_mov_b32 v{TMP}, s{sT0}")
        A(f"  v_mov_b32 v{TMP+1}, s{sOWN}")
        A(f"  v_mov_b32 v{TMP+2}, s{sDUMP}")
        A(f"  ds_write_b32 v{TMP}, v{TMP+1} offset:{WRD}")
        A(f"  ds_write_b32 v{TMP}, v{TMP+2} offset:{WRD+16}")
    A(f"  v_and_b32 v{a0}, 7, v{VJ}")
    A(f"  v_mul_u32_u24 v{a0}, {ESTR}, v{a0}")
    A(f"  v_lshrrev_b32 v{a1}, 3, v{VJ}")
    A(f"  v_lshl_add_u32 v{a0}, v{a1}, 5, v{a0}")
    A(f"  v_and_b32 v{a1}, 1, v{VG}")
    A(f"  v_lshl_add_u32 v{a0}, v{a1}, 4, v{a0}")
    A(f"  v_lshrrev_b32 v{a1}, 1, v{VG}")
    A(f"  v_mul_u32_u24 v{a1}, {SLOT}, v{a1}")
    A(f"  v_add_u32 v{a0}, v{a0}, v{a1}")
    A(f"  s_mul_i32 s{sT0}, s{sW}, {3*64}")
    A(f"  v_add_u32 v{a0}, s{sT0}, v{a0}")
    A(f"  v_mul_u32_u24 v{a1}, 384, v{VJ}")
    A(f"  v_lshl_add_u32 v{a1}, v{VG}, 3, v{a1}")
    A(f"  s_mul_i32 s{sT0}, s{sW}, 96")
    A(f"  v_add_u32 v{a1}, s{sT0}, v{a1}")
    A(f"  v_lshlrev_b32 v{TMP+12}, 3, v{VL}")
    A(f"  v_and_b32 v{TMP+2}, 31, v{VL}")
    A(f"  v_lshlrev_b32 v{TMP+2}, 4, v{TMP+2}")
    A(f"  s_mul_i32 s{sT0}, s{sW}, 1536")
    A(f"  v_add_u32 v{TMP+2}, s{sT0}, v{TMP+2}")
    A("  s_waitcnt lgkmcnt(0)")
    A("  s_barrier")
    A(f"  ds_read_b64 v[{PT}:{PT+1}], v{TMP+12} offset:{PTB}")
    def reduce(region, dstbase, pre=0):
        A(f"  v_add_u32 v{TMP+3}, {region}, v{a0}")
        for tau in range(3):
            for sg in range(4):
                r=dstbase+(tau*4+sg)*4
                A(f"  ds_read_b128 v[{r}:{r+3}], v{TMP+3} offset:{sg*2*SLOT+tau*64}")
        for tau in range(3):
            A(f"  s_waitcnt lgkmcnt({(2-tau)*4})")
            r=dstbase+tau*16
            for i in range(4):
                A(f"  v_add_f32 v{r+i}, v{r+i}, v{r+4+i}")
                A(f"  v_add_f32 v{r+8+i}, v{r+8+i}, v{r+12+i}")
            for i in range(4):
                A(f"  v_add_f32 v{r+i}, v{r+i}, v{r+8+i}")
            for i in range(4):
                A(f"  v_mov_b32 v{r+4+i}, v{r+i}")
            A("  s_nop 1")
            for i in range(4):
                A(f"  v_permlane32_swap_b32 v{r+i}, v{r+4+i}")
            A("  s_nop 1")
            for i in range(4):
                A(f"  v_add_f32 v{r+i}, v{r+i}, v{r+4+i}")
    if steal:
        A(f"  ds_read_b128 v[{TMP+4}:{TMP+7}], v{VZ} offset:{WRD}")
        A(f"  ds_read_b128 v[{TMP+8}:{TMP+11}], v{VZ} offset:{WRD+16}")
        A("  s_waitcnt vmcnt(0)")
        A("  s_waitcnt lgkmcnt(0)")
        A(f"  v_add3_u32 v{TMP+4}, v{TMP+4}, v{TMP+5}, v{TMP+6}")
        A(f"  v_add_u32 v{TMP+4}, v{TMP+4}, v{TMP+7}")
        A(f"  v_or3_b32 v{TMP+8}, v{TMP+8}, v{TMP+9}, v{TMP+10}")
        A(f"  v_or_b32 v{TMP+8}, v{TMP+8}, v{TMP+11}")
        A("  s_nop 0")
        A(f"  v_readfirstlane_b32 s{sOWN}, v{TMP+4}")
        A(f"  v_readfirstlane_b32 s{sDUMP}, v{TMP+8}")
        A(f"  s_lshl_b32 s{sT1}, s{sW}, 2")
        A(f"  s_cmp_eq_u32 s{sDUMP}, 0")
        A("  s_cbranch_scc1 L_nogive")
        reduce(REGB, Y)
        A("  s_mov_b32 exec_hi, 0")
        for tau in range(3):
            r=Y+tau*16
            A(f"  buffer_store_dwordx4 v[{r}:{r+3}], v{TMP+2}, s[{sWS}:{sWS+3}], s{sHP} offen offset:{512*tau} sc0 sc1")
        A("  s_mov_b64 exec, -1")
        A("L_nogive:")
    reduce(REGA, X)
    if steal:
        A(f"  s_cmp_eq_u32 s{sDUMP}, 0")
        A("  s_cbranch_scc1 L_noflag")
        A("  s_waitcnt vmcnt(0)")
        A(f"  s_add_u32 s{sT0}, s{sCP}, s{sT1}")
        A("  s_mov_b64 exec, 1")
        A(f"  v_mov_b32 v{TMP+13}, 1")
        A(f"  buffer_store_dword v{TMP+13}, v{VZ}, s[{sWS}:{sWS+3}], s{sT0} offen offset:16 sc0 sc1")
        A("  s_mov_b64 exec, -1")
        A("L_noflag:")
        A(f"  s_cmp_ge_u32 s{sOWN}, {T}")
        A("  s_cbranch_scc1 L_noget")
        A(f"  s_mov_b32 s{sIT}, 0")
        A(f"  s_add_u32 s{sT0}, s{sCO}, s{sT1}")
        A("L_poll:")
        A(f"  buffer_load_dword v{TMP+13}, v{VZ}, s[{sWS}:{sWS+3}], s{sT0} offen offset:16 sc0 sc1")
        A("  s_waitcnt vmcnt(0)")
        A(f"  v_readfirstlane_b32 s{sT2}, v{TMP+13}")
        A(f"  s_cmp_lg_u32 s{sT2}, 0")
        A("  s_cbranch_scc1 L_got")
        A(f"  s_add_u32 s{sIT}, s{sIT}, 1")
        A(f"  s_cmp_ge_u32 s{sIT}, {maxpoll}")
        A("  s_cbranch_scc1 L_got")
        A("  s_sleep 1")
        A("  s_branch L_poll")
        A("L_got:")
        for tau in range(3):
            r=Y+tau*4
            A(f"  buffer_load_dwordx4 v[{r}:{r+3}], v{TMP+2}, s[{sWS}:{sWS+3}], s{sHO} offen offset:{512*tau} sc0 sc1")
        A("  s_waitcnt vmcnt(0)")
        for tau in range(3):
            for i in range(4):
                A(f"  v_add_f32 v{X+tau*16+i}, v{X+tau*16+i}, v{Y+tau*4+i}")
        A("L_noget:")
    Z=Y+48
    for tau in range(3):
        r=X+tau*16
        A(f"  v_cvt_pk_bf16_f32 v{r+8}, v{r}, v{r+1}")
        A(f"  v_cvt_pk_bf16_f32 v{r+9}, v{r+2}, v{r+3}")
    A("  s_nop 1")
    for tau in range(3):
        r=X+tau*16
        A(f"  v_mfma_f32_16x16x16_bf16 v[{Z+4*tau}:{Z+4*tau+3}], v[{r+8}:{r+9}], v[{PT}:{PT+1}], 0")
    A("  s_nop 7")
    for tau in range(3):
        z=Z+4*tau
        A(f"  v_cvt_pk_bf16_f32 v{Z+16+2*tau}, v{z}, v{z+1}")
        A(f"  v_cvt_pk_bf16_f32 v{Z+16+2*tau+1}, v{z+2}, v{z+3}")
    for tau in range(3):
        A(f"  buffer_store_dwordx2 v[{Z+16+2*tau}:{Z+16+2*tau+1}], v{a1}, s[{sO}:{sO+3}], 0 offen offset:{32*tau}{ostore}")
    if stamps:
        A("  s_waitcnt vmcnt(0)")
        stamp(4)
        A("  s_mov_b32 s8, s6"); A("  s_mov_b32 s9, s7"); A("  s_mov_b32 s10, 0x1000000"); A("  s_mov_b32 s11, 0x00020000")
        A("  s_getreg_b32 s96, hwreg(HW_REG_XCC_ID)")
        A(f"  s_lshl_b32 s98, s{sBH}, 2")
        A(f"  s_add_u32 s98, s98, s{sW}")
        A("  s_lshl_b32 s98, s98, 5")
        A("  s_add_u32 s98, s98, 0x400000")
        A("  v_mov_b32 v253, s98")
        A("  s_mov_b64 exec, 1")
        A(f"  v_mov_b32 v244, s{sST}")
        A(f"  v_mov_b32 v245, s{sDUMP}")
        A(f"  v_mov_b32 v246, s{sST+2}")
        A(f"  v_mov_b32 v247, s{sST+4}")
        A(f"  v_mov_b32 v248, s{sST+6}")
        A(f"  v_mov_b32 v249, s{sST+8}")
        A(f"  v_mov_b32 v250, s96")
        A(f"  v_mov_b32 v251, s{sOWN}")
        A(f"  buffer_store_dwordx4 v[244:247], v253, s[8:11], 0 offen")
        A(f"  buffer_store_dwordx4 v[248:251], v253, s[8:11], 0 offen offset:16")
        A("  s_mov_b64 exec, -1")
    if dbgtime:
        A("  s_waitcnt vmcnt(0)")
        A(f"  s_memrealtime s[{sST+2}:{sST+3}]")
        A("  s_waitcnt lgkmcnt(0)")
        A(f"  s_cmp_lg_u32 s{sW}, 0")
        A("  s_cbranch_scc1 L_done")
        A("  s_mov_b32 s8, s4"); A("  s_mov_b32 s9, s5"); A("  s_mov_b32 s10, 256"); A("  s_mov_b32 s11, 0x00020000")
        A("  s_mov_b64 exec, 1")
        A(f"  v_mov_b32 v244, s{sST+2}")
        A(f"  s_not_b32 s96, s{sST}")
        A(f"  v_mov_b32 v245, s96")
        A(f"  buffer_atomic_umax v244, v{VZ}, s[8:11], 0 offen")
        A(f"  buffer_atomic_umax v245, v{VZ}, s[8:11], 0 offen offset:4")
        A(f"  s_not_b32 s96, s{sST+2}")
        A(f"  v_mov_b32 v246, s96")
        A(f"  buffer_atomic_umax v246, v{VZ}, s[8:11], 0 offen offset:8")
    A("L_done:")
    A("  s_endpgm")
    A("L_dump:")
    d0=TT+8; d1=TT+9; d2=TT+10; d3=TT+11
    A(f"  v_lshrrev_b32 v{d0}, 1, v{VG}")
    A(f"  v_mul_u32_u24 v{d0}, {SLOT}, v{d0}")
    A(f"  s_mul_i32 s{sT0}, s{sW}, {2*SLOT}")
    A(f"  s_add_u32 s{sT0}, s{sT0}, s{sDOFF}")
    A(f"  v_add_u32 v{d0}, s{sT0}, v{d0}")
    A(f"  v_and_b32 v{d1}, 1, v{VG}")
    A(f"  v_lshl_add_u32 v{d0}, v{d1}, 4, v{d0}")
    A(f"  v_lshl_add_u32 v{d0}, v{VJ}, 5, v{d0}")
    A(f"  v_cmp_gt_u32 vcc, 8, v{VJ}")
    A(f"  v_mov_b32 v{d2}, -256")
    A(f"  v_mov_b32 v{d3}, 512")
    A(f"  s_nop 0")
    A(f"  v_cndmask_b32 v{d1}, v{d2}, v{d3}, vcc")
    A(f"  v_add_u32 v{d1}, v{d1}, v{d0}")
    A("  s_mov_b32 exec_lo, -1"); A("  s_mov_b32 exec_hi, 0")
    for e in range(8):
        acc=(0*8+e)*4
        A(f"  ds_write_b128 v{d0}, a[{acc}:{acc+3}] offset:{e*ESTR}")
    A("  s_mov_b32 exec_lo, 0"); A("  s_mov_b32 exec_hi, -1")
    for e in range(8):
        acc=(2*8+e)*4
        A(f"  ds_write_b128 v{d0}, a[{acc}:{acc+3}] offset:{e*ESTR+256}")
    A("  s_mov_b32 exec_lo, 0x00ff00ff"); A("  s_mov_b32 exec_hi, 0xff00ff00")
    for e in range(8):
        acc=(1*8+e)*4
        A(f"  ds_write_b128 v{d1}, a[{acc}:{acc+3}] offset:{e*ESTR}")
    A("  s_mov_b64 exec, -1")
    A("  s_waitcnt lgkmcnt(0)")
    A(f"  s_cmp_eq_u32 s{sZERO}, 0")
    A("  s_cbranch_scc1 L_dret")
    zero_acc()
    A("L_dret:")
    A(f"  s_setpc_b64 s[{sRET}:{sRET+1}]")
    A('.section .rodata,"a"'); A(".p2align 6"); A(f".amdhsa_kernel {KN}")
    A(f"  .amdhsa_next_free_vgpr {256+96}"); A("  .amdhsa_next_free_sgpr 100"); A(f"  .amdhsa_accum_offset 256")
    A("  .amdhsa_group_segment_fixed_size 0"); A("  .amdhsa_kernarg_size 64"); A("  .amdhsa_user_sgpr_count 2"); A("  .amdhsa_user_sgpr_kernarg_segment_ptr 1"); A("  .amdhsa_system_sgpr_workgroup_id_x 1")
    A("  .amdhsa_float_denorm_mode_32 3")
    A(".end_amdhsa_kernel")
    return "\n".join(x for x in L if x is not None)+"\n", LDS
if __name__=="__main__":
    s,lds=gen()
    out=sys.argv[1] if len(sys.argv)>1 else "b3.s"
    open(out,"w").write(s)
    print("wrote",out,"lds",lds)
```

```python
import sys
from gen_b3 import HEADER, KN

DOC = """
Linformer low-rank attention, one workgroup (4 waves) per (b,h); HBM-bound streaming of K and V (805 MB).
 * A block = 64 rows of K (or V) = 24 KB.  Wave w streams blocks 4n+w (rotated per workgroup), 16 of K then 16 of V,
   two blocks in flight, refilled per column group (8 x dwordx4 nt loads).
 * Lane (g=l>>4, j=l&15) loads 16 B chunks; column groups: cg0 = row_a chunks 0-15, cg1 = row_a 16-23 | row_b 0-7,
   cg2 = row_b 8-23, with row_a = 16g+t, row_b = 16g+8+t, t = 0..7.  v_perm_b32 transposes pairs of rows into the
   MFMA B operand (k = 8g+t); the A operand holds E[r][row_a] in rows 0-7 and E[r][row_b] in rows 8-15, so one
   v_mfma_f32_16x16x32_bf16 per (cg, element e) accumulates both row sets (24 accumulator tiles, fp32).
 * Partials go to LDS; the last wave to finish K reduces kp, computes scores (bf16-rounded like the reference),
   softmax with the true row max, and leaves P^T in LDS.  After V: reduce vp, o^T = vp^T P^T by MFMA, store bf16.
"""

def gen(rotmul=13, nt=" nt", stamps=False, qit=1, dbgtime=False, ostore="", midbar=1, fine=True, vreuse=False, oneloop=False, sync=1, hashrot=0, thr=0, thrpar=0):
    W=4
    L=[]
    A=L.append
    ESTR=800; SLOT=8*ESTR; REG=8*SLOT
    KPB=0; KPS=400
    WRD=3200
    PTB=3328
    QB=3840
    REGK=QB+6144
    REGA=REGK+REG
    LDS=REGA+REG
    A(HEADER.rstrip("\n"))
    A(f"; @launch grid=(256,1,1) block=({W*64},1,1) lds={LDS}")
    for c in DOC.strip("\n").split("\n"): A(";" + (" " + c if c else ""))
    A('.amdgcn_target "amdgcn-amd-amdhsa--gfx950"')
    A(".text"); A(f".globl {KN}"); A(".p2align 8"); A(f".type {KN},@function"); A(f"{KN}:")
    X=0; Y=96; TT=192; VO0=212; VOE=215; PT=216
    VL=218; VG=219; VJ=220; VZ=221; VONE=223; TMP=224
    AA=96
    sK=8; sV=12; sE=16; sF=20; sQ=24; sO=28; sL=32; sEL=36
    sL2=40
    sW=46; sROT=47; sN=49; sSEL0=52; sSEL1=53; sIT=54
    sT0=55; sT1=56; sT2=57
    sOFF=(50,58); sOFFE=51
    sDOFF=66; sZERO=67; sBH=72
    sRET=74; sST=80
    def stamp(slot):
        if not stamps: return
        A(f"  s_memrealtime s[{sST+2*slot}:{sST+2*slot+1}]")
        A(f"  s_waitcnt lgkmcnt(0)")
    A("  s_cmp_ge_u32 s2, 256")
    A("  s_cbranch_scc1 L_done")
    A("  s_load_dwordx8 s[88:95], s[0:1], 0")
    A("  s_load_dwordx4 s[96:99], s[0:1], 32")
    if stamps or dbgtime:
        A("  s_load_dwordx4 s[4:7], s[0:1], 48")
        A(f"  s_memrealtime s[{sST}:{sST+1}]")
    A("  s_and_b32 s3, s2, 7")
    A(f"  s_lshr_b32 s{sBH}, s2, 3")
    A("  s_lshl_b32 s3, s3, 5")
    A(f"  s_or_b32 s{sBH}, s{sBH}, s3")
    A(f"  v_and_b32 v{VL}, 63, v0")
    A(f"  v_lshrrev_b32 v{TMP}, 6, v0")
    A(f"  v_lshrrev_b32 v{VG}, 4, v{VL}")
    A(f"  v_readfirstlane_b32 s{sW}, v{TMP}")
    A(f"  v_and_b32 v{VJ}, 15, v{VL}")
    A(f"  v_mul_u32_u24 v{VO0}, 6144, v{VG}")
    A(f"  v_lshl_add_u32 v{VO0}, v{VJ}, 4, v{VO0}")
    A(f"  v_cmp_gt_u32 vcc, 8, v{VJ}")
    A(f"  v_mov_b32 v{TMP}, 2944")
    A(f"  v_mov_b32 v{TMP+1}, 256")
    A(f"  v_add_u32 v{VO0+2}, 3200, v{VO0}")
    A(f"  v_cndmask_b32 v{VO0+1}, v{TMP}, v{TMP+1}, vcc")
    A(f"  v_add_u32 v{VO0+1}, v{VO0+1}, v{VO0}")
    A(f"  v_and_b32 v{TMP}, 7, v{VJ}")
    A(f"  v_lshlrev_b32 v{VOE}, 13, v{TMP}")
    A(f"  v_lshl_add_u32 v{VOE}, v{VG}, 5, v{VOE}")
    A(f"  v_lshrrev_b32 v{TMP}, 3, v{VJ}")
    A(f"  v_lshl_add_u32 v{VOE}, v{TMP}, 4, v{VOE}")
    A(f"  v_mov_b32 v{VZ}, 0")
    A(f"  v_mov_b32 v{VONE}, 1")
    A(f"  s_mul_i32 s{sT0}, s{sBH}, 0x180000")
    if hashrot:
        A(f"  s_add_u32 s{sROT}, s{sBH}, 1")
        A(f"  s_mul_i32 s{sROT}, s{sROT}, {hashrot}")
        A(f"  s_lshr_b32 s{sROT}, s{sROT}, 26")
    else:
        A(f"  s_mul_i32 s{sROT}, s{sBH}, {rotmul}")
    A(f"  s_add_u32 s{sROT}, s{sROT}, s{sW}")
    A(f"  s_and_b32 s{sT2}, s{sROT}, 63")
    A(f"  s_mul_i32 s{sOFF[0]}, s{sT2}, 24576")
    A(f"  s_lshl_b32 s{sOFFE}, s{sT2}, 7")
    A(f"  s_mov_b32 s{sL+2}, 0x180000"); A(f"  s_mov_b32 s{sL+3}, 0x00020000")
    A(f"  s_mov_b32 s{sL2+2}, 0x180000"); A(f"  s_mov_b32 s{sL2+3}, 0x00020000")
    A(f"  s_mov_b32 s{sEL+2}, 65536"); A(f"  s_mov_b32 s{sEL+3}, 0x00020000")
    A("  s_waitcnt lgkmcnt(0)")
    A(f"  s_add_u32 s{sL}, s90, s{sT0}"); A(f"  s_addc_u32 s{sL+1}, s91, 0")
    A(f"  s_mov_b32 s{sEL}, s94"); A(f"  s_mov_b32 s{sEL+1}, s95")
    SRD=(sL,sL2)
    def eload(areg):
        A(f"  buffer_load_dwordx4 a[{areg}:{areg+3}], v{VOE}, s[{sEL}:{sEL+3}], s{sOFFE} offen")
    def cgloads(bi, buf, cg):
        for t in range(8):
            r=buf+(cg*8+t)*4
            A(f"  buffer_load_dwordx4 v[{r}:{r+3}], v{VO0+cg}, s[{SRD[bi]}:{SRD[bi]+3}], s{sOFF[bi]} offen offset:{384*t}{nt}")
    cgloads(0,X,0); eload(AA+0); cgloads(0,X,1); cgloads(0,X,2)
    A(f"  s_mov_b32 s{sL2}, s{sL}"); A(f"  s_mov_b32 s{sL2+1}, s{sL+1}")
    A(f"  s_add_u32 s{sT1}, s{sROT}, 4")
    A(f"  s_and_b32 s{sT2}, s{sT1}, 63")
    A(f"  s_mul_i32 s{sOFF[1]}, s{sT2}, 24576")
    A(f"  s_lshl_b32 s{sOFFE}, s{sT2}, 7")
    cgloads(1,Y,0); eload(AA+8); cgloads(1,Y,1); cgloads(1,Y,2)
    A(f"  s_mov_b32 s{sN}, 2")
    def srd(d, lo, off, size):
        if off is None:
            A(f"  s_mov_b32 s{d}, s{lo}"); A(f"  s_mov_b32 s{d+1}, s{lo+1}")
        else:
            A(f"  s_add_u32 s{d}, s{lo}, s{off}"); A(f"  s_addc_u32 s{d+1}, s{lo+1}, 0")
        A(f"  s_mov_b32 s{d+2}, {size}"); A(f"  s_mov_b32 s{d+3}, 0x00020000")
    A(f"  s_mul_i32 s{sT1}, s{sBH}, 6144")
    srd(sK,90,sT0,0x180000)
    srd(sV,92,sT0,0x180000)
    srd(sE,94,None,65536)
    srd(sF,96,None,65536)
    srd(sQ,88,sT1,6144)
    srd(sO,98,sT1,6144)
    A(f"  s_mov_b32 s{sSEL0}, 0x05040100")
    A(f"  s_mov_b32 s{sSEL1}, 0x07060302")
    A(f"  v_mov_b32 v{TMP+4}, 0")
    A(f"  ds_write_b32 v{VZ}, v{TMP+4} offset:{WRD}")
    def zero_acc():
        for i in range(96):
            A(f"  v_accvgpr_write_b32 a{i}, 0")
    zero_acc()
    if thr:
        A("  s_getreg_b32 s60, hwreg(HW_REG_XCC_ID)")
        A("  s_and_b32 s60, s60, 1")
        A(f"  s_cmp_eq_u32 s60, {thrpar}")
        A("  s_cselect_b32 s60, 1, 0")
        A(f"  s_cmp_ge_u32 s{sW}, {4-thr}")
        A("  s_cselect_b32 s60, s60, 0")
    A("  s_waitcnt lgkmcnt(0)")
    A("  s_barrier")
    def proc_cg(buf, areg, cg):
        seq=list(range(8))
        def perms(e):
            w,p=e>>1,e&1
            ts=TT+4*(e%3)
            sel=sSEL1 if p else sSEL0
            for u in range(4):
                re=buf+(cg*8+2*u)*4+w
                ro=buf+(cg*8+2*u+1)*4+w
                A(f"  v_perm_b32 v{ts+u}, v{ro}, v{re}, s{sel}")
        def mfma(e):
            ts=TT+4*(e%3)
            acc=(cg*8+e)*4
            A(f"  v_mfma_f32_16x16x32_bf16 a[{acc}:{acc+3}], a[{areg}:{areg+3}], v[{ts}:{ts+3}], a[{acc}:{acc+3}]")
        perms(0)
        for e in range(8):
            if e+1<8: perms(e+1)
            else: A("  s_nop 1")
            mfma(e)
    def next_addr(bi, dummy_after=None):
        A(f"  s_cmp_ge_u32 s{sN}, 16")
        A(f"  s_cselect_b32 s{SRD[bi]}, s{sV}, s{sK}")
        A(f"  s_cselect_b32 s{SRD[bi]+1}, s{sV+1}, s{sK+1}")
        A(f"  s_cselect_b32 s{sEL}, s{sF}, s{sE}")
        A(f"  s_cselect_b32 s{sEL+1}, s{sF+1}, s{sE+1}")
        A(f"  s_lshl_b32 s{sT0}, s{sN}, 2")
        A(f"  s_add_u32 s{sT0}, s{sT0}, s{sROT}")
        A(f"  s_and_b32 s{sT0}, s{sT0}, 63")
        A(f"  s_mul_i32 s{sOFF[bi]}, s{sT0}, 24576")
        A(f"  s_lshl_b32 s{sOFFE}, s{sT0}, 7")
        if vreuse:
            A(f"  s_cmp_ge_u32 s{sN}, 32")
            A(f"  s_cselect_b32 s{sOFF[bi]}, 0x180000, s{sOFF[bi]}")
            A(f"  s_cselect_b32 s{sOFFE}, 0x10000, s{sOFFE}")
        A(f"  s_add_u32 s{sN}, s{sN}, 1")
    tid=[0]
    def twait(n):
        A(f"  s_waitcnt vmcnt({n})")
        if thr and n>=16:
            tid[0]+=1
            A("  s_cmp_eq_u32 s60, 0")
            A(f"  s_cbranch_scc1 L_tw{tid[0]}")
            A(f"  s_waitcnt vmcnt({n-8})")
            A(f"L_tw{tid[0]}:")
    def slot(bi, buf, acur, anext, issue=True, waits=(41,42,42), side=False):
        twait(waits[0])
        if side: sidejobs()
        proc_cg(buf,acur,0)
        if issue:
            next_addr(bi); cgloads(bi,buf,0); eload(anext)
        twait(waits[1])
        proc_cg(buf,acur,1)
        if issue: cgloads(bi,buf,1)
        twait(waits[2])
        proc_cg(buf,acur,2)
        if issue: cgloads(bi,buf,2)
    uid=[0]
    def sidejobs():
        uid[0]+=1
        A(f"  s_cmp_lg_u32 s{sIT}, {qit}")
        A(f"  s_cbranch_scc1 L_noside{uid[0]}")
        A(f"  s_cmp_lg_u32 s{sW}, 1")
        A(f"  s_cbranch_scc1 L_noside{uid[0]}")
        A(f"  v_lshlrev_b32 v{TMP}, 4, v{VL}")
        A(f"  s_mov_b32 m0, {QB}")
        A(f"  s_mov_b32 s{sT0}, 4096")
        for k in range(4):
            A(f"  buffer_load_dwordx4 v{TMP}, s[{sQ}:{sQ+3}], 0 offen offset:{1024*k} nt lds")
        A(f"  s_mov_b32 m0, {QB+4096}")
        A("  s_nop 0")
        for k in range(2):
            A(f"  buffer_load_dwordx4 v{TMP}, s[{sQ}:{sQ+3}], s{sT0} offen offset:{1024*k} nt lds")
        A(f"L_noside{uid[0]}:")
    def quad(side=False):
        if sync>=1: A("  s_barrier")
        slot(0,X,AA+0,AA+4,side=side)
        if sync>=3: A("  s_barrier")
        slot(1,Y,AA+8,AA+12)
        if sync>=2: A("  s_barrier")
        slot(0,X,AA+4,AA+0)
        if sync>=3: A("  s_barrier")
        slot(1,Y,AA+12,AA+8)
    A(f"  s_mov_b32 s{sIT}, 0")
    A("L_kloop:")
    quad(side=True)
    A(f"  s_add_u32 s{sIT}, s{sIT}, 1")
    A(f"  s_cmp_lt_u32 s{sIT}, 4")
    A("  s_cbranch_scc1 L_kloop")
    stamp(1)
    A(f"  s_mov_b32 s{sDOFF}, {REGK}")
    A(f"  s_mov_b32 s{sZERO}, 1")
    A(f"  s_call_b64 s[{sRET}:{sRET+1}], L_dump")
    A(f"  s_mov_b64 exec, 1")
    A(f"  ds_add_rtn_u32 v{TMP+1}, v{VZ}, v{VONE} offset:{WRD}")
    A(f"  s_mov_b64 exec, -1")
    A("  s_waitcnt lgkmcnt(0)")
    A(f"  v_readfirstlane_b32 s{sT0}, v{TMP+1}")
    A(f"  s_cmp_lg_u32 s{sT0}, 3")
    A("  s_cbranch_scc1 L_nokfin")
    R_=TMP; S0=TT; b0=TT+8; b1=TT+9
    A(f"  v_lshlrev_b32 v{b0}, 4, v{VL}")
    A(f"  v_add_u32 v{b0}, {REGK}, v{b0}")
    A(f"  v_and_b32 v{b1}, 1, v{VL}")
    A(f"  v_mul_u32_u24 v{b1}, {4*KPS}, v{b1}")
    A(f"  v_lshrrev_b32 v{TT+10}, 1, v{VL}")
    A(f"  v_lshl_add_u32 v{b1}, v{TT+10}, 4, v{b1}")
    A(f"  s_mov_b32 s{sIT}, 0")
    A("  s_mov_b32 exec_lo, -1"); A("  s_mov_b32 exec_hi, 0xffff")
    A("L_kf1:")
    for ee in range(2):
        for s in range(8):
            A(f"  ds_read_b128 v[{R_+4*s}:{R_+4*s+3}], v{b0} offset:{s*SLOT+ee*ESTR}")
        for s in range(1,8):
            A(f"  s_waitcnt lgkmcnt({7-s})")
            for i in range(4):
                if s==1: A(f"  v_add_f32 v{S0+4*ee+i}, v{R_+i}, v{R_+4+i}")
                else:    A(f"  v_add_f32 v{S0+4*ee+i}, v{S0+4*ee+i}, v{R_+4*s+i}")
    for i in range(4):
        A(f"  v_cvt_pk_bf16_f32 v{R_+i}, v{S0+i}, v{S0+4+i}")
    for i in range(4):
        A(f"  ds_write_b32 v{b1}, v{R_+i} offset:{KPB+i*KPS}")
    A(f"  v_add_u32 v{b0}, {2*ESTR}, v{b0}")
    A(f"  v_add_u32 v{b1}, 4, v{b1}")
    A(f"  s_add_u32 s{sIT}, s{sIT}, 1")
    A(f"  s_cmp_lt_u32 s{sIT}, 4")
    A("  s_cbranch_scc1 L_kf1")
    A("  s_mov_b64 exec, -1")
    A(f"  v_and_b32 v{b0}, 7, v{VJ}")
    A(f"  v_mul_u32_u24 v{b0}, {KPS}, v{b0}")
    A(f"  v_lshl_add_u32 v{b0}, v{VG}, 4, v{b0}")
    A(f"  v_mul_u32_u24 v{b1}, 384, v{VJ}")
    A(f"  v_lshl_add_u32 v{b1}, v{VG}, 4, v{b1}")
    A("  s_waitcnt lgkmcnt(0)")
    SS=TT
    for half_ in range(2):
        for s in range(3):
            sg=half_*3+s
            A(f"  ds_read_b128 v[{R_+8*s}:{R_+8*s+3}], v{b0} offset:{KPB+64*sg}")
            A(f"  ds_read_b128 v[{R_+8*s+4}:{R_+8*s+7}], v{b1} offset:{QB+64*sg}")
        for s in range(3):
            A(f"  s_waitcnt lgkmcnt({4-2*s})")
            c = "0" if (half_==0 and s==0) else f"v[{SS}:{SS+3}]"
            A(f"  v_mfma_f32_16x16x32_bf16 v[{SS}:{SS+3}], v[{R_+8*s}:{R_+8*s+3}], v[{R_+8*s+4}:{R_+8*s+7}], {c}")
    A("  s_nop 7")
    A("  s_nop 1")
    t0=TMP; t1=TMP+1
    def round_bf16():
        A(f"  v_cvt_pk_bf16_f32 v{t0}, v{SS}, v{SS+1}")
        A(f"  v_cvt_pk_bf16_f32 v{t1}, v{SS+2}, v{SS+3}")
        A(f"  v_lshlrev_b32 v{SS}, 16, v{t0}")
        A(f"  v_and_b32 v{SS+1}, 0xffff0000, v{t0}")
        A(f"  v_lshlrev_b32 v{SS+2}, 16, v{t1}")
        A(f"  v_and_b32 v{SS+3}, 0xffff0000, v{t1}")
    round_bf16()
    for i in range(4):
        A(f"  v_mul_f32 v{SS+i}, 0x3d93cd3a, v{SS+i}")
    round_bf16()
    A(f"  v_max_f32 v{t0}, v{SS}, v{SS+1}")
    A(f"  v_max3_f32 v{t0}, v{SS+2}, v{SS+3}, v{t0}")
    A(f"  ds_swizzle_b32 v{t1}, v{t0} offset:0x401F")
    A("  s_waitcnt lgkmcnt(0)")
    A(f"  v_max_f32 v{t0}, v{t0}, v{t1}")
    for i in range(4):
        A(f"  v_sub_f32 v{SS+i}, v{SS+i}, v{t0}")
    for i in range(4):
        A(f"  v_mul_f32 v{SS+i}, 0x3fb8aa3b, v{SS+i}")
    for i in range(4):
        A(f"  v_exp_f32 v{SS+i}, v{SS+i}")
    A("  s_nop 0")
    A(f"  v_add_f32 v{t0}, v{SS}, v{SS+1}")
    A(f"  v_add_f32 v{t1}, v{SS+2}, v{SS+3}")
    A(f"  v_add_f32 v{t0}, v{t0}, v{t1}")
    A(f"  ds_swizzle_b32 v{t1}, v{t0} offset:0x401F")
    A("  s_waitcnt lgkmcnt(0)")
    A(f"  v_add_f32 v{t0}, v{t0}, v{t1}")
    A(f"  v_rcp_f32 v{t0}, v{t0}")
    A("  s_nop 0")
    for i in range(4):
        A(f"  v_mul_f32 v{SS+i}, v{SS+i}, v{t0}")
    A(f"  v_cvt_pk_bf16_f32 v{PT}, v{SS}, v{SS+1}")
    A(f"  v_cvt_pk_bf16_f32 v{PT+1}, v{SS+2}, v{SS+3}")
    A("  s_mov_b32 exec_lo, 0")
    A(f"  v_mov_b32 v{PT}, 0")
    A(f"  v_mov_b32 v{PT+1}, 0")
    A("  s_mov_b64 exec, -1")
    A(f"  v_lshlrev_b32 v{t0}, 3, v{VL}")
    A(f"  ds_write_b64 v{t0}, v[{PT}:{PT+1}] offset:{PTB}")
    A("L_nokfin:")
    if midbar: A("  s_barrier")
    A(f"  s_mov_b32 s{sIT}, 0")
    A("L_vloop:")
    quad()
    A(f"  s_add_u32 s{sIT}, s{sIT}, 1")
    A(f"  s_cmp_lt_u32 s{sIT}, {4 if vreuse else 3}")
    A("  s_cbranch_scc1 L_vloop")
    if not vreuse:
        slot(0,X,AA+0,AA+4)
        slot(1,Y,AA+8,AA+12)
        slot(0,X,AA+4,None,issue=False,waits=(41,33,25))
        slot(1,Y,AA+12,None,issue=False,waits=(16,8,0))
    stamp(2)
    a0=TMP; a1=TMP+1
    A(f"  s_mov_b32 s{sDOFF}, {REGA}")
    A(f"  s_mov_b32 s{sZERO}, 0")
    A(f"  s_call_b64 s[{sRET}:{sRET+1}], L_dump")
    A(f"  v_and_b32 v{a0}, 7, v{VJ}")
    A(f"  v_mul_u32_u24 v{a0}, {ESTR}, v{a0}")
    A(f"  v_lshrrev_b32 v{a1}, 3, v{VJ}")
    A(f"  v_lshl_add_u32 v{a0}, v{a1}, 5, v{a0}")
    A(f"  v_and_b32 v{a1}, 1, v{VG}")
    A(f"  v_lshl_add_u32 v{a0}, v{a1}, 4, v{a0}")
    A(f"  v_lshrrev_b32 v{a1}, 1, v{VG}")
    A(f"  v_mul_u32_u24 v{a1}, {SLOT}, v{a1}")
    A(f"  v_add_u32 v{a0}, v{a0}, v{a1}")
    A(f"  s_mul_i32 s{sT0}, s{sW}, {3*64}")
    A(f"  s_add_u32 s{sT0}, s{sT0}, {REGA}")
    A(f"  v_add_u32 v{a0}, s{sT0}, v{a0}")
    A(f"  v_mul_u32_u24 v{a1}, 384, v{VJ}")
    A(f"  v_lshl_add_u32 v{a1}, v{VG}, 3, v{a1}")
    A(f"  s_mul_i32 s{sT0}, s{sW}, 96")
    A(f"  v_add_u32 v{a1}, s{sT0}, v{a1}")
    A(f"  v_lshlrev_b32 v{TMP+12}, 3, v{VL}")
    A("  s_waitcnt vmcnt(0) lgkmcnt(0)")
    A("  s_barrier")
    A(f"  ds_read_b64 v[{PT}:{PT+1}], v{TMP+12} offset:{PTB}")
    for tau in range(3):
        for sg in range(4):
            r=X+(tau*4+sg)*4
            A(f"  ds_read_b128 v[{r}:{r+3}], v{a0} offset:{sg*2*SLOT+tau*64}")
    Z=Y+48
    for tau in range(3):
        A(f"  s_waitcnt lgkmcnt({(2-tau)*4})")
        r=X+tau*16
        for i in range(4):
            A(f"  v_add_f32 v{r+i}, v{r+i}, v{r+4+i}")
            A(f"  v_add_f32 v{r+8+i}, v{r+8+i}, v{r+12+i}")
        for i in range(4):
            A(f"  v_add_f32 v{r+i}, v{r+i}, v{r+8+i}")
        for i in range(4):
            A(f"  v_mov_b32 v{r+4+i}, v{r+i}")
        A("  s_nop 1")
        for i in range(4):
            A(f"  v_permlane32_swap_b32 v{r+i}, v{r+4+i}")
        A("  s_nop 1")
        for i in range(4):
            A(f"  v_add_f32 v{r+i}, v{r+i}, v{r+4+i}")
        A(f"  v_cvt_pk_bf16_f32 v{r+8}, v{r}, v{r+1}")
        A(f"  v_cvt_pk_bf16_f32 v{r+9}, v{r+2}, v{r+3}")
        A("  s_nop 1")
        A(f"  v_mfma_f32_16x16x16_bf16 v[{Z+4*tau}:{Z+4*tau+3}], v[{r+8}:{r+9}], v[{PT}:{PT+1}], 0")
    A("  s_nop 7")
    for tau in range(3):
        z=Z+4*tau
        A(f"  v_cvt_pk_bf16_f32 v{Z+16+2*tau}, v{z}, v{z+1}")
        A(f"  v_cvt_pk_bf16_f32 v{Z+16+2*tau+1}, v{z+2}, v{z+3}")
    for tau in range(3):
        A(f"  buffer_store_dwordx2 v[{Z+16+2*tau}:{Z+16+2*tau+1}], v{a1}, s[{sO}:{sO+3}], 0 offen offset:{32*tau}{ostore}")
    if stamps:
        A("  s_waitcnt vmcnt(0)")
        stamp(3)
        A("  s_mov_b32 s8, s6"); A("  s_mov_b32 s9, s7"); A("  s_mov_b32 s10, 0x1000000"); A("  s_mov_b32 s11, 0x00020000")
        A("  s_getreg_b32 s96, hwreg(HW_REG_XCC_ID)")
        A(f"  s_lshl_b32 s98, s{sBH}, 2")
        A(f"  s_add_u32 s98, s98, s{sW}")
        A("  s_lshl_b32 s98, s98, 5")
        A("  s_add_u32 s98, s98, 0x400000")
        A("  v_mov_b32 v253, s98")
        A("  s_mov_b64 exec, 1")
        A(f"  v_mov_b32 v244, s{sST}")
        A(f"  v_mov_b32 v245, 0")
        A(f"  v_mov_b32 v246, s{sST+2}")
        A(f"  v_mov_b32 v247, s{sST+2}")
        A(f"  v_mov_b32 v248, s{sST+4}")
        A(f"  v_mov_b32 v249, s{sST+6}")
        A(f"  v_mov_b32 v250, s96")
        A(f"  v_mov_b32 v251, s{sN}")
        A(f"  buffer_store_dwordx4 v[244:247], v253, s[8:11], 0 offen")
        A(f"  buffer_store_dwordx4 v[248:251], v253, s[8:11], 0 offen offset:16")
        A("  s_mov_b64 exec, -1")
    if dbgtime:
        A("  s_waitcnt vmcnt(0)")
        A(f"  s_memrealtime s[{sST+2}:{sST+3}]")
        A("  s_waitcnt lgkmcnt(0)")
        A(f"  s_cmp_lg_u32 s{sW}, 0")
        A("  s_cbranch_scc1 L_done")
        A("  s_mov_b32 s8, s4"); A("  s_mov_b32 s9, s5"); A("  s_mov_b32 s10, 256"); A("  s_mov_b32 s11, 0x00020000")
        A("  s_mov_b64 exec, 1")
        A(f"  v_mov_b32 v244, s{sST+2}")
        A(f"  s_not_b32 s97, s{sST}")
        A(f"  v_mov_b32 v245, s97")
        A(f"  buffer_atomic_umax v244, v{VZ}, s[8:11], 0 offen")
        A(f"  buffer_atomic_umax v245, v{VZ}, s[8:11], 0 offen offset:4")
    A("L_done:")
    A("  s_endpgm")
    A("L_dump:")
    d0=TT+8; d1=TT+9; d2=TT+10; d3=TT+11
    A("  s_nop 7")
    A(f"  v_lshrrev_b32 v{d0}, 1, v{VG}")
    A(f"  v_mul_u32_u24 v{d0}, {SLOT}, v{d0}")
    A(f"  s_mul_i32 s{sT0}, s{sW}, {2*SLOT}")
    A(f"  s_add_u32 s{sT0}, s{sT0}, s{sDOFF}")
    A(f"  v_add_u32 v{d0}, s{sT0}, v{d0}")
    A(f"  v_and_b32 v{d1}, 1, v{VG}")
    A(f"  v_lshl_add_u32 v{d0}, v{d1}, 4, v{d0}")
    A(f"  v_lshl_add_u32 v{d0}, v{VJ}, 5, v{d0}")
    A(f"  v_cmp_gt_u32 vcc, 8, v{VJ}")
    A(f"  v_mov_b32 v{d2}, -256")
    A(f"  v_mov_b32 v{d3}, 512")
    A(f"  s_nop 0")
    A(f"  v_cndmask_b32 v{d1}, v{d2}, v{d3}, vcc")
    A(f"  v_add_u32 v{d1}, v{d1}, v{d0}")
    A("  s_mov_b32 exec_lo, -1"); A("  s_mov_b32 exec_hi, 0")
    for e in range(8):
        acc=(0*8+e)*4
        A(f"  ds_write_b128 v{d0}, a[{acc}:{acc+3}] offset:{e*ESTR}")
    A("  s_mov_b32 exec_lo, 0"); A("  s_mov_b32 exec_hi, -1")
    for e in range(8):
        acc=(2*8+e)*4
        A(f"  ds_write_b128 v{d0}, a[{acc}:{acc+3}] offset:{e*ESTR+256}")
    A("  s_mov_b32 exec_lo, 0x00ff00ff"); A("  s_mov_b32 exec_hi, 0xff00ff00")
    for e in range(8):
        acc=(1*8+e)*4
        A(f"  ds_write_b128 v{d1}, a[{acc}:{acc+3}] offset:{e*ESTR}")
    A("  s_mov_b64 exec, -1")
    A("  s_waitcnt lgkmcnt(0)")
    A(f"  s_cmp_eq_u32 s{sZERO}, 0")
    A("  s_cbranch_scc1 L_dret")
    zero_acc()
    A("L_dret:")
    A(f"  s_setpc_b64 s[{sRET}:{sRET+1}]")
    A('.section .rodata,"a"'); A(".p2align 6"); A(f".amdhsa_kernel {KN}")
    A(f"  .amdhsa_next_free_vgpr {256+112}"); A("  .amdhsa_next_free_sgpr 100"); A(f"  .amdhsa_accum_offset 256")
    A("  .amdhsa_group_segment_fixed_size 0"); A("  .amdhsa_kernarg_size 64"); A("  .amdhsa_user_sgpr_count 2"); A("  .amdhsa_user_sgpr_kernarg_segment_ptr 1"); A("  .amdhsa_system_sgpr_workgroup_id_x 1")
    A("  .amdhsa_float_denorm_mode_32 3")
    A(".end_amdhsa_kernel")
    return "\n".join(x for x in L if x is not None)+"\n", LDS
if __name__=="__main__":
    s,lds=gen()
    out=sys.argv[1] if len(sys.argv)>1 else "b5.s"
    open(out,"w").write(s)
    print("wrote",out,"lds",lds)
```

```python
import sys
from gen_b3 import HEADER, KN

DOC = """
Linformer low-rank attention, one workgroup (4 waves) per (b,h); HBM-bound streaming of K and V (805 MB).
 * A block = 64 rows of K (or V) = 24 KB.  Wave w streams blocks 4n+w (rotated per workgroup), 16 of K then 16 of V,
   two blocks in flight, refilled per column group (8 x dwordx4 nt loads).
 * Lane (g=l>>4, j=l&15) loads 16 B chunks; column groups: cg0 = row_a chunks 0-15, cg1 = row_a 16-23 | row_b 0-7,
   cg2 = row_b 8-23, with row_a = 16g+t, row_b = 16g+8+t, t = 0..7.  v_perm_b32 transposes pairs of rows into the
   MFMA B operand (k = 8g+t); the A operand holds E[r][row_a] in rows 0-7 and E[r][row_b] in rows 8-15, so one
   v_mfma_f32_16x16x32_bf16 per (cg, element e) accumulates both row sets (24 accumulator tiles, fp32).
 * Partials go to LDS; the last wave to finish K reduces kp, computes scores (bf16-rounded like the reference),
   softmax with the true row max, and leaves P^T in LDS.  After V: reduce vp, o^T = vp^T P^T by MFMA, store bf16.
"""

def gen(rotmul=13, nt=" nt", stamps=False, qit=1, dbgtime=False, ostore="", midbar=1, fine=True, vreuse=False, oneloop=False, sync=1, hashrot=0, thr=0, thrpar=0, streams=1, x_swap=0, touch=0):
    W=4
    L=[]
    A=L.append
    ESTR=800; SLOT=8*ESTR; REG=8*SLOT
    KPB=0; KPS=400
    WRD=3200
    PTB=3328
    QB=3840
    REGK=QB+6144
    REGA=REGK+REG
    LDS=REGA+REG
    A(HEADER.rstrip("\n"))
    A(f"; @launch grid=(256,1,1) block=({W*64},1,1) lds={LDS}")
    for c in DOC.strip("\n").split("\n"): A(";" + (" " + c if c else ""))
    A('.amdgcn_target "amdgcn-amd-amdhsa--gfx950"')
    A(".text"); A(f".globl {KN}"); A(".p2align 8"); A(f".type {KN},@function"); A(f"{KN}:")
    X=0; Y=96; TT=192; VO0=212; VOE=215; PT=216
    VL=218; VG=219; VJ=220; VZ=221; VONE=223; TMP=224
    AA=96
    sK=8; sV=12; sE=16; sF=20; sQ=24; sO=28; sL=32; sEL=36
    sL2=40
    sW=46; sROT=47; sN=49; sSEL0=52; sSEL1=53; sIT=54
    sT0=55; sT1=56; sT2=57
    sOFF=(50,58); sOFFE=51
    sDOFF=66; sZERO=67; sBH=72
    sRET=74; sST=80
    def stamp(slot):
        if not stamps: return
        A(f"  s_memrealtime s[{sST+2*slot}:{sST+2*slot+1}]")
        A(f"  s_waitcnt lgkmcnt(0)")
    A("  s_cmp_ge_u32 s2, 256")
    A("  s_cbranch_scc1 L_done")
    A("  s_load_dwordx8 s[88:95], s[0:1], 0")
    A("  s_load_dwordx4 s[96:99], s[0:1], 32")
    if stamps or dbgtime:
        A("  s_load_dwordx4 s[4:7], s[0:1], 48")
        A(f"  s_memrealtime s[{sST}:{sST+1}]")
    A("  s_and_b32 s3, s2, 7")
    A(f"  s_lshr_b32 s{sBH}, s2, 3")
    A("  s_lshl_b32 s3, s3, 5")
    A(f"  s_or_b32 s{sBH}, s{sBH}, s3")
    A(f"  v_and_b32 v{VL}, 63, v0")
    A(f"  v_lshrrev_b32 v{TMP}, 6, v0")
    A(f"  v_lshrrev_b32 v{VG}, 4, v{VL}")
    A(f"  v_readfirstlane_b32 s{sW}, v{TMP}")
    A(f"  v_and_b32 v{VJ}, 15, v{VL}")
    A(f"  v_mul_u32_u24 v{VO0}, 6144, v{VG}")
    A(f"  v_lshl_add_u32 v{VO0}, v{VJ}, 4, v{VO0}")
    A(f"  v_cmp_gt_u32 vcc, 8, v{VJ}")
    A(f"  v_mov_b32 v{TMP}, 2944")
    A(f"  v_mov_b32 v{TMP+1}, 256")
    A(f"  v_add_u32 v{VO0+2}, 3200, v{VO0}")
    A(f"  v_cndmask_b32 v{VO0+1}, v{TMP}, v{TMP+1}, vcc")
    A(f"  v_add_u32 v{VO0+1}, v{VO0+1}, v{VO0}")
    A(f"  v_and_b32 v{TMP}, 7, v{VJ}")
    A(f"  v_lshlrev_b32 v{VOE}, 13, v{TMP}")
    A(f"  v_lshl_add_u32 v{VOE}, v{VG}, 5, v{VOE}")
    A(f"  v_lshrrev_b32 v{TMP}, 3, v{VJ}")
    A(f"  v_lshl_add_u32 v{VOE}, v{TMP}, 4, v{VOE}")
    A(f"  v_mov_b32 v{VZ}, 0")
    A(f"  v_mov_b32 v{VONE}, 1")
    A(f"  s_mul_i32 s{sT0}, s{sBH}, 0x180000")
    if hashrot:
        A(f"  s_add_u32 s{sROT}, s{sBH}, 1")
        A(f"  s_mul_i32 s{sROT}, s{sROT}, {hashrot}")
        A(f"  s_lshr_b32 s{sROT}, s{sROT}, 26")
    else:
        A(f"  s_mul_i32 s{sROT}, s{sBH}, {rotmul}")
    if streams==1:
        A(f"  s_add_u32 s{sROT}, s{sROT}, s{sW}")
    elif streams==2:
        A(f"  s_lshr_b32 s{sT1}, s{sW}, 1")
        A(f"  s_lshl_b32 s{sT1}, s{sT1}, 5")
        A(f"  s_add_u32 s{sROT}, s{sROT}, s{sT1}")
        A(f"  s_and_b32 s{sT1}, s{sW}, 1")
        A(f"  s_add_u32 s{sROT}, s{sROT}, s{sT1}")
    else:
        A(f"  s_lshl_b32 s{sT1}, s{sW}, 4")
        A(f"  s_add_u32 s{sROT}, s{sROT}, s{sT1}")
    A(f"  s_and_b32 s{sT2}, s{sROT}, 63")
    A(f"  s_mul_i32 s{sOFF[0]}, s{sT2}, 24576")
    A(f"  s_lshl_b32 s{sOFFE}, s{sT2}, 7")
    A(f"  s_mov_b32 s{sL+2}, 0x180000"); A(f"  s_mov_b32 s{sL+3}, 0x00020000")
    A(f"  s_mov_b32 s{sL2+2}, 0x180000"); A(f"  s_mov_b32 s{sL2+3}, 0x00020000")
    A(f"  s_mov_b32 s{sEL+2}, 65536"); A(f"  s_mov_b32 s{sEL+3}, 0x00020000")
    A("  s_waitcnt lgkmcnt(0)")
    if x_swap:
        A(f"  s_lshr_b32 s{sT1}, s{sBH}, {x_swap-1}")
        A(f"  s_and_b32 s{sT1}, s{sT1}, 1")
        A(f"  s_cmp_eq_u32 s{sT1}, 1")
        A("  s_cselect_b32 s60, s92, s90"); A("  s_cselect_b32 s61, s93, s91")
        A("  s_cselect_b32 s92, s90, s92"); A("  s_cselect_b32 s93, s91, s93")
        A("  s_mov_b32 s90, s60"); A("  s_mov_b32 s91, s61")
    A(f"  s_add_u32 s{sL}, s90, s{sT0}"); A(f"  s_addc_u32 s{sL+1}, s91, 0")
    A(f"  s_mov_b32 s{sEL}, s94"); A(f"  s_mov_b32 s{sEL+1}, s95")
    SRD=(sL,sL2)
    def eload(areg):
        A(f"  buffer_load_dwordx4 a[{areg}:{areg+3}], v{VOE}, s[{sEL}:{sEL+3}], s{sOFFE} offen")
    def cgloads(bi, buf, cg):
        for t in range(8):
            r=buf+(cg*8+t)*4
            A(f"  buffer_load_dwordx4 v[{r}:{r+3}], v{VO0+cg}, s[{SRD[bi]}:{SRD[bi]+3}], s{sOFF[bi]} offen offset:{384*t}{nt}")
    if touch:
        A(f"  v_mov_b32 v204, 0")
        A(f"  buffer_load_dword v204, v{VZ}, s[{sL}:{sL+3}], s{sL+2} offen nt")
    cgloads(0,X,0); eload(AA+0); cgloads(0,X,1); cgloads(0,X,2)
    A(f"  s_mov_b32 s{sL2}, s{sL}"); A(f"  s_mov_b32 s{sL2+1}, s{sL+1}")
    A(f"  s_add_u32 s{sT1}, s{sROT}, {4//streams}")
    A(f"  s_and_b32 s{sT2}, s{sT1}, 63")
    A(f"  s_mul_i32 s{sOFF[1]}, s{sT2}, 24576")
    A(f"  s_lshl_b32 s{sOFFE}, s{sT2}, 7")
    if touch:
        A(f"  buffer_load_dword v204, v{VZ}, s[{sL}:{sL+3}], s{sL+2} offen nt")
    cgloads(1,Y,0); eload(AA+8); cgloads(1,Y,1); cgloads(1,Y,2)
    A(f"  s_mov_b32 s{sN}, 2")
    def srd(d, lo, off, size):
        if off is None:
            A(f"  s_mov_b32 s{d}, s{lo}"); A(f"  s_mov_b32 s{d+1}, s{lo+1}")
        else:
            A(f"  s_add_u32 s{d}, s{lo}, s{off}"); A(f"  s_addc_u32 s{d+1}, s{lo+1}, 0")
        A(f"  s_mov_b32 s{d+2}, {size}"); A(f"  s_mov_b32 s{d+3}, 0x00020000")
    A(f"  s_mul_i32 s{sT1}, s{sBH}, 6144")
    srd(sK,90,sT0,0x180000)
    srd(sV,92,sT0,0x180000)
    srd(sE,94,None,65536)
    srd(sF,96,None,65536)
    srd(sQ,88,sT1,6144)
    srd(sO,98,sT1,6144)
    A("  s_mov_b32 s78, 0x180000"); A("  s_mov_b32 s79, 0x00020000")
    A(f"  s_mov_b32 s{sSEL0}, 0x05040100")
    A(f"  s_mov_b32 s{sSEL1}, 0x07060302")
    A(f"  v_mov_b32 v{TMP+4}, 0")
    A(f"  ds_write_b32 v{VZ}, v{TMP+4} offset:{WRD}")
    def zero_acc():
        for i in range(96):
            A(f"  v_accvgpr_write_b32 a{i}, 0")
    zero_acc()
    if thr:
        A("  s_getreg_b32 s60, hwreg(HW_REG_XCC_ID)")
        A("  s_and_b32 s60, s60, 1")
        A(f"  s_cmp_eq_u32 s60, {thrpar}")
        A("  s_cselect_b32 s60, 1, 0")
        A(f"  s_cmp_ge_u32 s{sW}, {4-thr}")
        A("  s_cselect_b32 s60, s60, 0")
    A("  s_waitcnt lgkmcnt(0)")
    A("  s_barrier")
    def proc_cg(buf, areg, cg):
        seq=list(range(8))
        def perms(e):
            w,p=e>>1,e&1
            ts=TT+4*(e%3)
            sel=sSEL1 if p else sSEL0
            for u in range(4):
                re=buf+(cg*8+2*u)*4+w
                ro=buf+(cg*8+2*u+1)*4+w
                A(f"  v_perm_b32 v{ts+u}, v{ro}, v{re}, s{sel}")
        def mfma(e):
            ts=TT+4*(e%3)
            acc=(cg*8+e)*4
            A(f"  v_mfma_f32_16x16x32_bf16 a[{acc}:{acc+3}], a[{areg}:{areg+3}], v[{ts}:{ts+3}], a[{acc}:{acc+3}]")
        perms(0)
        for e in range(8):
            if e+1<8: perms(e+1)
            else: A("  s_nop 1")
            mfma(e)
    def next_addr(bi, dummy_after=None):
        A(f"  s_cmp_ge_u32 s{sN}, 16")
        A(f"  s_cselect_b32 s{SRD[bi]}, s{sV}, s{sK}")
        A(f"  s_cselect_b32 s{SRD[bi]+1}, s{sV+1}, s{sK+1}")
        A(f"  s_cselect_b32 s{sEL}, s{sF}, s{sE}")
        A(f"  s_cselect_b32 s{sEL+1}, s{sF+1}, s{sE+1}")
        if streams==1:
            A(f"  s_lshl_b32 s{sT0}, s{sN}, 2")
        else:
            A(f"  s_and_b32 s{sT0}, s{sN}, 15")
            if streams==2: A(f"  s_lshl_b32 s{sT0}, s{sT0}, 1")
        A(f"  s_add_u32 s{sT0}, s{sT0}, s{sROT}")
        A(f"  s_and_b32 s{sT0}, s{sT0}, 63")
        A(f"  s_mul_i32 s{sOFF[bi]}, s{sT0}, 24576")
        A(f"  s_lshl_b32 s{sOFFE}, s{sT0}, 7")
        if vreuse:
            A(f"  s_cmp_ge_u32 s{sN}, 32")
            A(f"  s_cselect_b32 s{sOFF[bi]}, 0x180000, s{sOFF[bi]}")
            A(f"  s_cselect_b32 s{sOFFE}, 0x10000, s{sOFFE}")
        A(f"  s_add_u32 s{sN}, s{sN}, 1")
    sTS=40+4
    sTS=76
    def do_touch():
        A(f"  s_add_u32 s{sT1}, s{sN}, {touch-1}")
        A(f"  s_cmp_ge_u32 s{sT1}, 16")
        A(f"  s_cselect_b32 s{sTS}, s{sV}, s{sK}")
        A(f"  s_cselect_b32 s{sTS+1}, s{sV+1}, s{sK+1}")
        A(f"  s_lshl_b32 s{sT0}, s{sT1}, 2")
        A(f"  s_add_u32 s{sT0}, s{sT0}, s{sROT}")
        A(f"  s_and_b32 s{sT0}, s{sT0}, 63")
        A(f"  s_mul_i32 s{sT0}, s{sT0}, 24576")
        A(f"  s_cmp_ge_u32 s{sT1}, 32")
        A(f"  s_cselect_b32 s{sT0}, 0x180000, s{sT0}")
        A(f"  buffer_load_dword v204, v{VZ}, s[{sTS}:{sTS+3}], s{sT0} offen nt")
    tid=[0]
    def twait(n):
        A(f"  s_waitcnt vmcnt({n})")
        if thr and n>=16:
            tid[0]+=1
            A("  s_cmp_eq_u32 s60, 0")
            A(f"  s_cbranch_scc1 L_tw{tid[0]}")
            A(f"  s_waitcnt vmcnt({n-8})")
            A(f"L_tw{tid[0]}:")
    TW=(42,44,44) if touch else (41,42,42)
    def slot(bi, buf, acur, anext, issue=True, waits=None, side=False):
        if waits is None: waits=TW
        twait(waits[0])
        if side: sidejobs()
        proc_cg(buf,acur,0)
        if issue:
            next_addr(bi)
            if touch: do_touch()
            cgloads(bi,buf,0); eload(anext)
        twait(waits[1])
        proc_cg(buf,acur,1)
        if issue: cgloads(bi,buf,1)
        twait(waits[2])
        proc_cg(buf,acur,2)
        if issue: cgloads(bi,buf,2)
    uid=[0]
    def sidejobs():
        uid[0]+=1
        A(f"  s_cmp_lg_u32 s{sIT}, {qit}")
        A(f"  s_cbranch_scc1 L_noside{uid[0]}")
        A(f"  s_cmp_lg_u32 s{sW}, 1")
        A(f"  s_cbranch_scc1 L_noside{uid[0]}")
        A(f"  v_lshlrev_b32 v{TMP}, 4, v{VL}")
        A(f"  s_mov_b32 m0, {QB}")
        A(f"  s_mov_b32 s{sT0}, 4096")
        for k in range(4):
            A(f"  buffer_load_dwordx4 v{TMP}, s[{sQ}:{sQ+3}], 0 offen offset:{1024*k} nt lds")
        A(f"  s_mov_b32 m0, {QB+4096}")
        A("  s_nop 0")
        for k in range(2):
            A(f"  buffer_load_dwordx4 v{TMP}, s[{sQ}:{sQ+3}], s{sT0} offen offset:{1024*k} nt lds")
        A(f"L_noside{uid[0]}:")
    def quad(side=False):
        if sync>=1: A("  s_barrier")
        slot(0,X,AA+0,AA+4,side=side)
        if sync>=3: A("  s_barrier")
        slot(1,Y,AA+8,AA+12)
        if sync>=2: A("  s_barrier")
        slot(0,X,AA+4,AA+0)
        if sync>=3: A("  s_barrier")
        slot(1,Y,AA+12,AA+8)
    A(f"  s_mov_b32 s{sIT}, 0")
    A("L_kloop:")
    quad(side=True)
    A(f"  s_add_u32 s{sIT}, s{sIT}, 1")
    A(f"  s_cmp_lt_u32 s{sIT}, 4")
    A("  s_cbranch_scc1 L_kloop")
    stamp(1)
    A(f"  s_mov_b32 s{sDOFF}, {REGK}")
    A(f"  s_mov_b32 s{sZERO}, 1")
    A(f"  s_call_b64 s[{sRET}:{sRET+1}], L_dump")
    A(f"  s_mov_b64 exec, 1")
    A(f"  ds_add_rtn_u32 v{TMP+1}, v{VZ}, v{VONE} offset:{WRD}")
    A(f"  s_mov_b64 exec, -1")
    A("  s_waitcnt lgkmcnt(0)")
    A(f"  v_readfirstlane_b32 s{sT0}, v{TMP+1}")
    A(f"  s_cmp_lg_u32 s{sT0}, 3")
    A("  s_cbranch_scc1 L_nokfin")
    R_=TMP; S0=TT; b0=TT+8; b1=TT+9
    A(f"  v_lshlrev_b32 v{b0}, 4, v{VL}")
    A(f"  v_add_u32 v{b0}, {REGK}, v{b0}")
    A(f"  v_and_b32 v{b1}, 1, v{VL}")
    A(f"  v_mul_u32_u24 v{b1}, {4*KPS}, v{b1}")
    A(f"  v_lshrrev_b32 v{TT+10}, 1, v{VL}")
    A(f"  v_lshl_add_u32 v{b1}, v{TT+10}, 4, v{b1}")
    A(f"  s_mov_b32 s{sIT}, 0")
    A("  s_mov_b32 exec_lo, -1"); A("  s_mov_b32 exec_hi, 0xffff")
    A("L_kf1:")
    for ee in range(2):
        for s in range(8):
            A(f"  ds_read_b128 v[{R_+4*s}:{R_+4*s+3}], v{b0} offset:{s*SLOT+ee*ESTR}")
        for s in range(1,8):
            A(f"  s_waitcnt lgkmcnt({7-s})")
            for i in range(4):
                if s==1: A(f"  v_add_f32 v{S0+4*ee+i}, v{R_+i}, v{R_+4+i}")
                else:    A(f"  v_add_f32 v{S0+4*ee+i}, v{S0+4*ee+i}, v{R_+4*s+i}")
    for i in range(4):
        A(f"  v_cvt_pk_bf16_f32 v{R_+i}, v{S0+i}, v{S0+4+i}")
    for i in range(4):
        A(f"  ds_write_b32 v{b1}, v{R_+i} offset:{KPB+i*KPS}")
    A(f"  v_add_u32 v{b0}, {2*ESTR}, v{b0}")
    A(f"  v_add_u32 v{b1}, 4, v{b1}")
    A(f"  s_add_u32 s{sIT}, s{sIT}, 1")
    A(f"  s_cmp_lt_u32 s{sIT}, 4")
    A("  s_cbranch_scc1 L_kf1")
    A("  s_mov_b64 exec, -1")
    A(f"  v_and_b32 v{b0}, 7, v{VJ}")
    A(f"  v_mul_u32_u24 v{b0}, {KPS}, v{b0}")
    A(f"  v_lshl_add_u32 v{b0}, v{VG}, 4, v{b0}")
    A(f"  v_mul_u32_u24 v{b1}, 384, v{VJ}")
    A(f"  v_lshl_add_u32 v{b1}, v{VG}, 4, v{b1}")
    A("  s_waitcnt lgkmcnt(0)")
    SS=TT
    for half_ in range(2):
        for s in range(3):
            sg=half_*3+s
            A(f"  ds_read_b128 v[{R_+8*s}:{R_+8*s+3}], v{b0} offset:{KPB+64*sg}")
            A(f"  ds_read_b128 v[{R_+8*s+4}:{R_+8*s+7}], v{b1} offset:{QB+64*sg}")
        for s in range(3):
            A(f"  s_waitcnt lgkmcnt({4-2*s})")
            c = "0" if (half_==0 and s==0) else f"v[{SS}:{SS+3}]"
            A(f"  v_mfma_f32_16x16x32_bf16 v[{SS}:{SS+3}], v[{R_+8*s}:{R_+8*s+3}], v[{R_+8*s+4}:{R_+8*s+7}], {c}")
    A("  s_nop 7")
    A("  s_nop 1")
    t0=TMP; t1=TMP+1
    def round_bf16():
        A(f"  v_cvt_pk_bf16_f32 v{t0}, v{SS}, v{SS+1}")
        A(f"  v_cvt_pk_bf16_f32 v{t1}, v{SS+2}, v{SS+3}")
        A(f"  v_lshlrev_b32 v{SS}, 16, v{t0}")
        A(f"  v_and_b32 v{SS+1}, 0xffff0000, v{t0}")
        A(f"  v_lshlrev_b32 v{SS+2}, 16, v{t1}")
        A(f"  v_and_b32 v{SS+3}, 0xffff0000, v{t1}")
    round_bf16()
    for i in range(4):
        A(f"  v_mul_f32 v{SS+i}, 0x3d93cd3a, v{SS+i}")
    round_bf16()
    A(f"  v_max_f32 v{t0}, v{SS}, v{SS+1}")
    A(f"  v_max3_f32 v{t0}, v{SS+2}, v{SS+3}, v{t0}")
    A(f"  ds_swizzle_b32 v{t1}, v{t0} offset:0x401F")
    A("  s_waitcnt lgkmcnt(0)")
    A(f"  v_max_f32 v{t0}, v{t0}, v{t1}")
    for i in range(4):
        A(f"  v_sub_f32 v{SS+i}, v{SS+i}, v{t0}")
    for i in range(4):
        A(f"  v_mul_f32 v{SS+i}, 0x3fb8aa3b, v{SS+i}")
    for i in range(4):
        A(f"  v_exp_f32 v{SS+i}, v{SS+i}")
    A("  s_nop 0")
    A(f"  v_add_f32 v{t0}, v{SS}, v{SS+1}")
    A(f"  v_add_f32 v{t1}, v{SS+2}, v{SS+3}")
    A(f"  v_add_f32 v{t0}, v{t0}, v{t1}")
    A(f"  ds_swizzle_b32 v{t1}, v{t0} offset:0x401F")
    A("  s_waitcnt lgkmcnt(0)")
    A(f"  v_add_f32 v{t0}, v{t0}, v{t1}")
    A(f"  v_rcp_f32 v{t0}, v{t0}")
    A("  s_nop 0")
    for i in range(4):
        A(f"  v_mul_f32 v{SS+i}, v{SS+i}, v{t0}")
    A(f"  v_cvt_pk_bf16_f32 v{PT}, v{SS}, v{SS+1}")
    A(f"  v_cvt_pk_bf16_f32 v{PT+1}, v{SS+2}, v{SS+3}")
    A("  s_mov_b32 exec_lo, 0")
    A(f"  v_mov_b32 v{PT}, 0")
    A(f"  v_mov_b32 v{PT+1}, 0")
    A("  s_mov_b64 exec, -1")
    A(f"  v_lshlrev_b32 v{t0}, 3, v{VL}")
    A(f"  ds_write_b64 v{t0}, v[{PT}:{PT+1}] offset:{PTB}")
    A("L_nokfin:")
    if midbar: A("  s_barrier")
    A(f"  s_mov_b32 s{sIT}, 0")
    A("L_vloop:")
    quad()
    A(f"  s_add_u32 s{sIT}, s{sIT}, 1")
    A(f"  s_cmp_lt_u32 s{sIT}, {4 if vreuse else 3}")
    A("  s_cbranch_scc1 L_vloop")
    if not vreuse:
        slot(0,X,AA+0,AA+4)
        slot(1,Y,AA+8,AA+12)
        slot(0,X,AA+4,None,issue=False,waits=((42,34,26) if touch else (41,33,25)))
        slot(1,Y,AA+12,None,issue=False,waits=(16,8,0))
    stamp(2)
    a0=TMP; a1=TMP+1
    A(f"  s_mov_b32 s{sDOFF}, {REGA}")
    A(f"  s_mov_b32 s{sZERO}, 0")
    A(f"  s_call_b64 s[{sRET}:{sRET+1}], L_dump")
    A(f"  v_and_b32 v{a0}, 7, v{VJ}")
    A(f"  v_mul_u32_u24 v{a0}, {ESTR}, v{a0}")
    A(f"  v_lshrrev_b32 v{a1}, 3, v{VJ}")
    A(f"  v_lshl_add_u32 v{a0}, v{a1}, 5, v{a0}")
    A(f"  v_and_b32 v{a1}, 1, v{VG}")
    A(f"  v_lshl_add_u32 v{a0}, v{a1}, 4, v{a0}")
    A(f"  v_lshrrev_b32 v{a1}, 1, v{VG}")
    A(f"  v_mul_u32_u24 v{a1}, {SLOT}, v{a1}")
    A(f"  v_add_u32 v{a0}, v{a0}, v{a1}")
    A(f"  s_mul_i32 s{sT0}, s{sW}, {3*64}")
    A(f"  s_add_u32 s{sT0}, s{sT0}, {REGA}")
    A(f"  v_add_u32 v{a0}, s{sT0}, v{a0}")
    A(f"  v_mul_u32_u24 v{a1}, 384, v{VJ}")
    A(f"  v_lshl_add_u32 v{a1}, v{VG}, 3, v{a1}")
    A(f"  s_mul_i32 s{sT0}, s{sW}, 96")
    A(f"  v_add_u32 v{a1}, s{sT0}, v{a1}")
    A(f"  v_lshlrev_b32 v{TMP+12}, 3, v{VL}")
    A("  s_waitcnt vmcnt(0) lgkmcnt(0)")
    A("  s_barrier")
    A(f"  ds_read_b64 v[{PT}:{PT+1}], v{TMP+12} offset:{PTB}")
    for tau in range(3):
        for sg in range(4):
            r=X+(tau*4+sg)*4
            A(f"  ds_read_b128 v[{r}:{r+3}], v{a0} offset:{sg*2*SLOT+tau*64}")
    Z=Y+48
    for tau in range(3):
        A(f"  s_waitcnt lgkmcnt({(2-tau)*4})")
        r=X+tau*16
        for i in range(4):
            A(f"  v_add_f32 v{r+i}, v{r+i}, v{r+4+i}")
            A(f"  v_add_f32 v{r+8+i}, v{r+8+i}, v{r+12+i}")
        for i in range(4):
            A(f"  v_add_f32 v{r+i}, v{r+i}, v{r+8+i}")
        for i in range(4):
            A(f"  v_mov_b32 v{r+4+i}, v{r+i}")
        A("  s_nop 1")
        for i in range(4):
            A(f"  v_permlane32_swap_b32 v{r+i}, v{r+4+i}")
        A("  s_nop 1")
        for i in range(4):
            A(f"  v_add_f32 v{r+i}, v{r+i}, v{r+4+i}")
        A(f"  v_cvt_pk_bf16_f32 v{r+8}, v{r}, v{r+1}")
        A(f"  v_cvt_pk_bf16_f32 v{r+9}, v{r+2}, v{r+3}")
        A("  s_nop 1")
        A(f"  v_mfma_f32_16x16x16_bf16 v[{Z+4*tau}:{Z+4*tau+3}], v[{r+8}:{r+9}], v[{PT}:{PT+1}], 0")
    A("  s_nop 7")
    for tau in range(3):
        z=Z+4*tau
        A(f"  v_cvt_pk_bf16_f32 v{Z+16+2*tau}, v{z}, v{z+1}")
        A(f"  v_cvt_pk_bf16_f32 v{Z+16+2*tau+1}, v{z+2}, v{z+3}")
    for tau in range(3):
        A(f"  buffer_store_dwordx2 v[{Z+16+2*tau}:{Z+16+2*tau+1}], v{a1}, s[{sO}:{sO+3}], 0 offen offset:{32*tau}{ostore}")
    if stamps:
        A("  s_waitcnt vmcnt(0)")
        stamp(3)
        A("  s_mov_b32 s8, s6"); A("  s_mov_b32 s9, s7"); A("  s_mov_b32 s10, 0x1000000"); A("  s_mov_b32 s11, 0x00020000")
        A("  s_getreg_b32 s96, hwreg(HW_REG_XCC_ID)")
        A(f"  s_lshl_b32 s98, s{sBH}, 2")
        A(f"  s_add_u32 s98, s98, s{sW}")
        A("  s_lshl_b32 s98, s98, 5")
        A("  s_add_u32 s98, s98, 0x400000")
        A("  v_mov_b32 v253, s98")
        A("  s_mov_b64 exec, 1")
        A(f"  v_mov_b32 v244, s{sST}")
        A(f"  v_mov_b32 v245, 0")
        A(f"  v_mov_b32 v246, s{sST+2}")
        A(f"  v_mov_b32 v247, s{sST+2}")
        A(f"  v_mov_b32 v248, s{sST+4}")
        A(f"  v_mov_b32 v249, s{sST+6}")
        A(f"  v_mov_b32 v250, s96")
        A(f"  v_mov_b32 v251, s{sN}")
        A(f"  buffer_store_dwordx4 v[244:247], v253, s[8:11], 0 offen")
        A(f"  buffer_store_dwordx4 v[248:251], v253, s[8:11], 0 offen offset:16")
        A("  s_mov_b64 exec, -1")
    if dbgtime:
        A("  s_waitcnt vmcnt(0)")
        A(f"  s_memrealtime s[{sST+2}:{sST+3}]")
        A("  s_waitcnt lgkmcnt(0)")
        A(f"  s_cmp_lg_u32 s{sW}, 0")
        A("  s_cbranch_scc1 L_done")
        A("  s_mov_b32 s8, s4"); A("  s_mov_b32 s9, s5"); A("  s_mov_b32 s10, 256"); A("  s_mov_b32 s11, 0x00020000")
        A("  s_mov_b64 exec, 1")
        A(f"  v_mov_b32 v244, s{sST+2}")
        A(f"  s_not_b32 s97, s{sST}")
        A(f"  v_mov_b32 v245, s97")
        A(f"  buffer_atomic_umax v244, v{VZ}, s[8:11], 0 offen")
        A(f"  buffer_atomic_umax v245, v{VZ}, s[8:11], 0 offen offset:4")
    A("L_done:")
    A("  s_endpgm")
    A("L_dump:")
    d0=TT+8; d1=TT+9; d2=TT+10; d3=TT+11
    A("  s_nop 7")
    A(f"  v_lshrrev_b32 v{d0}, 1, v{VG}")
    A(f"  v_mul_u32_u24 v{d0}, {SLOT}, v{d0}")
    A(f"  s_mul_i32 s{sT0}, s{sW}, {2*SLOT}")
    A(f"  s_add_u32 s{sT0}, s{sT0}, s{sDOFF}")
    A(f"  v_add_u32 v{d0}, s{sT0}, v{d0}")
    A(f"  v_and_b32 v{d1}, 1, v{VG}")
    A(f"  v_lshl_add_u32 v{d0}, v{d1}, 4, v{d0}")
    A(f"  v_lshl_add_u32 v{d0}, v{VJ}, 5, v{d0}")
    A(f"  v_cmp_gt_u32 vcc, 8, v{VJ}")
    A(f"  v_mov_b32 v{d2}, -256")
    A(f"  v_mov_b32 v{d3}, 512")
    A(f"  s_nop 0")
    A(f"  v_cndmask_b32 v{d1}, v{d2}, v{d3}, vcc")
    A(f"  v_add_u32 v{d1}, v{d1}, v{d0}")
    A("  s_mov_b32 exec_lo, -1"); A("  s_mov_b32 exec_hi, 0")
    for e in range(8):
        acc=(0*8+e)*4
        A(f"  ds_write_b128 v{d0}, a[{acc}:{acc+3}] offset:{e*ESTR}")
    A("  s_mov_b32 exec_lo, 0"); A("  s_mov_b32 exec_hi, -1")
    for e in range(8):
        acc=(2*8+e)*4
        A(f"  ds_write_b128 v{d0}, a[{acc}:{acc+3}] offset:{e*ESTR+256}")
    A("  s_mov_b32 exec_lo, 0x00ff00ff"); A("  s_mov_b32 exec_hi, 0xff00ff00")
    for e in range(8):
        acc=(1*8+e)*4
        A(f"  ds_write_b128 v{d1}, a[{acc}:{acc+3}] offset:{e*ESTR}")
    A("  s_mov_b64 exec, -1")
    A("  s_waitcnt lgkmcnt(0)")
    A(f"  s_cmp_eq_u32 s{sZERO}, 0")
    A("  s_cbranch_scc1 L_dret")
    zero_acc()
    A("L_dret:")
    A(f"  s_setpc_b64 s[{sRET}:{sRET+1}]")
    A('.section .rodata,"a"'); A(".p2align 6"); A(f".amdhsa_kernel {KN}")
    A(f"  .amdhsa_next_free_vgpr {256+112}"); A("  .amdhsa_next_free_sgpr 100"); A(f"  .amdhsa_accum_offset 256")
    A("  .amdhsa_group_segment_fixed_size 0"); A("  .amdhsa_kernarg_size 64"); A("  .amdhsa_user_sgpr_count 2"); A("  .amdhsa_user_sgpr_kernarg_segment_ptr 1"); A("  .amdhsa_system_sgpr_workgroup_id_x 1")
    A("  .amdhsa_float_denorm_mode_32 3")
    A(".end_amdhsa_kernel")
    return "\n".join(x for x in L if x is not None)+"\n", LDS
if __name__=="__main__":
    s,lds=gen()
    out=sys.argv[1] if len(sys.argv)>1 else "b5.s"
    open(out,"w").write(s)
    print("wrote",out,"lds",lds)
```
